```python
import torch

def _softmax(x, axis=-1):
    return torch.softmax(x, dim=axis)
def _gelu(x):
    return torch.nn.functional.gelu(x, approximate="tanh")
def _silu(x):
    return torch.nn.functional.silu(x)
def _sigmoid(x):
    return torch.sigmoid(x)
def _layernorm(x, axis=-1, eps=1e-5):
    m = x.mean(dim=axis, keepdim=True)
    v = x.var(dim=axis, keepdim=True, unbiased=False)
    return (x - m) / torch.sqrt(v + eps)
def _scatter_add(tgt, idx, src, axis=0):
    return tgt.clone().index_add_(axis, idx, src)
def _segment_sum(src, seg, n):
    out = torch.zeros((n,) + src.shape[1:], dtype=src.dtype)
    return out.index_add_(0, seg, src)
def _pad(x, pw):
    flat = tuple(v for pair in reversed(pw) for v in pair)
    return torch.nn.functional.pad(x, flat)

kernel_name = 'parallel_sum__mha_block__glu_gated_geglu__prompt'

def setup_inputs():

    _w = (lambda a: (lambda t: t.to(torch.bfloat16) if t.is_floating_point() else t)(torch.as_tensor(a)))
    def _A_setup():
        B, S, D, H = 1, 2048, 640, 32
        return {
            "x": _w((lambda *s: torch.randn(*s, dtype=torch.bfloat16) * 0.05)(B, S, D)),
            "wqkv": _w((lambda *s: torch.randn(*s, dtype=torch.bfloat16) * 0.05)(D, 3 * D)),
            "wo": _w((lambda *s: torch.randn(*s, dtype=torch.bfloat16) * 0.05)(D, D)),
        }
    _A_in = _A_setup()

    def _B_setup():
        B, S, Dm, Df = 1, 2048, 640, 1728
        return {
            "x": _w((lambda *s: torch.randn(*s, dtype=torch.bfloat16) * 0.05)(B, S, Dm)),
            "w_gate": _w((lambda *s: torch.randn(*s, dtype=torch.bfloat16) * 0.8)(Dm, Df) * (Dm ** -0.5)),
            "w_up": _w((lambda *s: torch.randn(*s, dtype=torch.bfloat16) * 0.8)(Dm, Df) * (Dm ** -0.5)),
            "w_down": _w((lambda *s: torch.randn(*s, dtype=torch.bfloat16) * 0.8)(Df, Dm) * (Df ** -0.5)),
        }
    _B_in = _B_setup()

    return {
        "A_x": _A_in["x"],
        "A_wqkv": _A_in["wqkv"],
        "A_wo": _A_in["wo"],
        "B_x": _B_in["x"],
        "B_w_gate": _B_in["w_gate"],
        "B_w_up": _B_in["w_up"],
        "B_w_down": _B_in["w_down"],
    }

def reference(A_x, A_wqkv, A_wo, B_x, B_w_gate, B_w_up, B_w_down):
    def _A_ref(x, wqkv, wo):
        B, S, D = x.shape
        H = 32
        Dh = D // H
        qkv = (lambda x, *d: x.permute(*d))((x @ wqkv).reshape(B, S, 3, H, Dh), 2, 0, 3, 1, 4)
        q, k, v = qkv[0], qkv[1], qkv[2]
        scores = torch.einsum("bhqd,bhkd->bhqk", q, k) * (Dh ** -0.5)
        p = _softmax(scores, axis=-1)
        o = torch.einsum("bhqk,bhkd->bhqd", p, v)
        return (lambda x, *d: x.permute(*d))(o, 0, 2, 1, 3).reshape(B, S, D) @ wo

    def _B_ref(x, w_gate, w_up, w_down):
        g = torch.einsum("bsd,df->bsf", x, w_gate)
        u = torch.einsum("bsd,df->bsf", x, w_up)
        h = _gelu(g) * u
        return torch.einsum("bsf,fd->bsd", h, w_down)

    x = A_x
    xn = _layernorm(x, axis=-1)
    return x + _A_ref(xn, A_wqkv, A_wo) + _B_ref(xn, B_w_gate, B_w_up, B_w_down)
```

```python
import sys

NAME = "parallel_sum__mha_block__glu_gated_geglu__prompt"

WS_XN = 0x0
WS_Q = 0x300000
WS_K = 0x700000
WS_VT = 0xB00000
WS_H = 0xF00000
WS_O = 0x1700000
WS_BYTES = 0x10000000

QSCALE = 0.32260095


def f2u(x):
    import struct
    return struct.unpack("<I", struct.pack("<f", x))[0]


class Asm:
    def __init__(self):
        self.L = []

    def __call__(self, s):
        for line in s.strip().split("\n"):
            line = line.strip()
            if line:
                self.L.append("    " + line)

    def label(self, s):
        self.L.append(s + ":")

    def raw(self, s):
        self.L.append(s)


def srd(a, d, lo, hi, nbytes):
    a(f"""s_mov_b32 s{d}, s{lo}
    s_and_b32 s{d+1}, s{hi}, 0xffff
    s_mov_b32 s{d+2}, {nbytes}
    s_mov_b32 s{d+3}, 0x00020000""")


def kernel_head(a, name):
    a.raw(f".globl {name}")
    a.raw(".p2align 8")
    a.raw(f".type {name},@function")
    a.label(name)


def bf16r(a, dst, src):
    a(f"""v_cvt_pk_bf16_f32 v{dst}, v{src}, v{src}
    v_lshlrev_b32 v{dst}, 16, v{dst}""")


def butterfly_sum(a, v, tmp, addr, lane):
    for m in (1, 2, 4, 8, 16, 32):
        a(f"""v_xor_b32 v{addr}, {m}, v{lane}
        v_lshlrev_b32 v{addr}, 2, v{addr}
        ds_bpermute_b32 v{tmp}, v{addr}, v{v}
        s_waitcnt lgkmcnt(0)
        v_add_f32 v{v}, v{v}, v{tmp}""")


def gen_ln(a):
    kernel_head(a, "ln_kernel")
    a("""s_cmp_ge_u32 s2, 512
    s_cbranch_scc1 ln_end
    s_load_dwordx2 s[4:5], s[0:1], 0
    s_load_dwordx2 s[6:7], s[0:1], 72
    v_lshrrev_b32 v1, 6, v0
    v_and_b32 v2, 63, v0
    s_nop 0
    v_readfirstlane_b32 s8, v1
    s_lshl_b32 s9, s2, 2
    s_add_u32 s9, s9, s8
    s_mul_i32 s10, s9, 1280
    s_waitcnt lgkmcnt(0)""")
    srd(a, 12, 4, 5, 2621440)
    srd(a, 16, 6, 7, WS_BYTES)
    a("v_lshlrev_b32 v3, 2, v2")
    for i in range(5):
        a(f"buffer_load_dword v{10+i}, v3, s[12:15], s10 offen offset:{256*i}")
    a("s_waitcnt vmcnt(0)")
    for i in range(5):
        a(f"""v_lshlrev_b32 v{20+2*i}, 16, v{10+i}
        v_and_b32 v{21+2*i}, 0xffff0000, v{10+i}""")
    a("v_add_f32 v30, v20, v21")
    for i in range(2, 10):
        a(f"v_add_f32 v30, v30, v{20+i}")
    butterfly_sum(a, 30, 40, 41, 2)
    a(f"v_mul_f32 v31, {hex(f2u(1.0/640))}, v30")
    a("v_mov_b32 v32, 0")
    for i in range(10):
        a(f"""v_sub_f32 v33, v{20+i}, v31
        v_fmac_f32 v32, v33, v33""")
    butterfly_sum(a, 32, 40, 41, 2)
    a(f"v_mul_f32 v32, {hex(f2u(1.0/640))}, v32")
    bf16r(a, 34, 31)
    bf16r(a, 35, 32)
    a(f"v_add_f32 v35, {hex(f2u(1e-5))}, v35")
    bf16r(a, 35, 35)
    a("v_sqrt_f32 v35, v35")
    a("s_nop 0")
    bf16r(a, 35, 35)
    a("v_rcp_f32 v36, v35")
    a("s_nop 0")
    for i in range(10):
        a(f"v_sub_f32 v{20+i}, v{20+i}, v34")
        bf16r(a, 20 + i, 20 + i)
        a(f"""v_mul_f32 v37, v{20+i}, v36
        v_fma_f32 v38, -v37, v35, v{20+i}
        v_fma_f32 v{20+i}, v38, v36, v37""")
    for i in range(5):
        a(f"v_cvt_pk_bf16_f32 v{10+i}, v{20+2*i}, v{21+2*i}")
    for i in range(5):
        a(f"buffer_store_dword v{10+i}, v3, s[16:19], s10 offen offset:{256*i}")
    a(f"""v_lshlrev_b32 v4, 17, v2
    s_lshl_b32 s11, s9, 6
    s_add_u32 s11, s11, {WS_K + 40}
    v_mov_b32 v6, 0x3f80
    v_mov_b32 v7, 0
    v_mov_b32 v8, 0
    v_mov_b32 v9, 0
    v_cmp_gt_u32 vcc, 32, v2
    s_and_saveexec_b64 s[20:21], vcc
    buffer_store_dwordx2 v[6:7], v4, s[16:19], s11 offen
    buffer_store_dwordx2 v[8:9], v4, s[16:19], s11 offen offset:8
    buffer_store_dwordx2 v[8:9], v4, s[16:19], s11 offen offset:16
    s_mov_b64 exec, s[20:21]""")
    a(f"""s_lshr_b32 s22, s9, 6
    s_and_b32 s23, s9, 63
    s_mul_i32 s23, s23, 48
    s_lshl_b32 s22, s22, 17
    s_add_u32 s22, s22, {WS_VT + 20*4096}
    v_add_u32 v4, s23, v2
    v_mov_b32 v5, 0x3f803f80
    v_cmp_gt_u32 vcc, 256, v4
    s_nop 1
    v_cndmask_b32 v6, 0, v5, vcc
    v_mov_b32 v7, v6
    v_mov_b32 v8, v6
    v_mov_b32 v9, v6
    v_lshlrev_b32 v4, 4, v4
    v_cmp_gt_u32 vcc, 48, v2
    s_and_saveexec_b64 s[20:21], vcc
    buffer_store_dwordx4 v[6:9], v4, s[16:19], s22 offen
    s_mov_b64 exec, s[20:21]""")
    a.label("ln_end")
    a("s_endpgm")


V_ACC = 64
V_AF = 32
V_BF = 48
V_VA = 16
V_VB = 20
V_OA = 21
V_OB = 22
V_LANE = 23
S_WS = 8
S_B0 = 12
S_B1 = 16
S_W = 20
S_WM = 21
S_WN = 22
S_M0 = 23
S_SA = 28
S_SB = 32
S_SBINC = 36
S_CNT = 37
S_MW = 38
S_ASRD = 40


def gemm_setup(a, nsub):
    stage_b = 16384
    a(f"""v_and_b32 v{V_LANE}, 63, v0
    v_lshrrev_b32 v1, 6, v0
    s_nop 0
    v_readfirstlane_b32 s{S_W}, v1
    s_lshr_b32 s{S_WM}, s{S_W}, 1
    s_and_b32 s{S_WN}, s{S_W}, 1
    s_lshl_b32 s{S_MW}, s{S_W}, 10""")
    L = V_LANE
    a(f"""v_and_b32 v1, 31, v{L}
    s_lshl_b32 s3, s{S_WM}, 6
    v_add_u32 v1, s3, v1
    v_lshlrev_b32 v1, 7, v1
    v_lshrrev_b32 v2, 5, v{L}
    v_bfe_u32 v3, v{L}, 1, 3""")
    for kk in range(4):
        a(f"""v_add_u32 v4, {2*kk}, v2
        v_xor_b32 v4, v4, v3
        v_lshl_add_u32 v{V_VA+kk}, v4, 4, v1""")
    a(f"""v_lshrrev_b32 v1, 5, v{L}
    v_lshlrev_b32 v1, 3, v1
    v_bfe_u32 v2, v{L}, 2, 2
    v_add_u32 v1, v1, v2
    v_lshlrev_b32 v1, 7, v1
    v_bfe_u32 v2, v{L}, 4, 1
    v_lshlrev_b32 v2, 1, v2
    v_bfe_u32 v3, v{L}, 1, 1
    v_add_u32 v2, v2, v3
    s_lshl_b32 s3, s{S_WN}, 2
    v_add_u32 v2, s3, v2
    v_bfe_u32 v3, v{L}, 3, 1
    v_lshlrev_b32 v3, 2, v3
    v_xor_b32 v2, v2, v3
    v_lshl_add_u32 v1, v2, 4, v1
    v_and_b32 v2, 1, v{L}
    v_lshl_add_u32 v1, v2, 3, v1
    v_add_u32 v{V_VB}, {stage_b}, v1""")


def gemm_voffA(a, dst, lda):
    L = V_LANE
    a(f"""v_lshrrev_b32 v1, 3, v{L}
    s_mov_b32 s3, {lda}
    v_mul_lo_u32 v1, v1, s3
    v_lshrrev_b32 v2, 4, v{L}
    s_lshl_b32 s3, s{S_WN}, 2
    v_add_u32 v2, s3, v2
    v_and_b32 v2, 7, v2
    v_and_b32 v3, 7, v{L}
    v_xor_b32 v2, v2, v3
    v_lshl_add_u32 v{dst}, v2, 4, v1""")


def gemm_voffB(a, dst, s_ldb):
    L = V_LANE
    a(f"""v_lshrrev_b32 v1, 3, v{L}
    v_mul_lo_u32 v1, v1, s{s_ldb}
    v_bfe_u32 v2, v{L}, 4, 1
    v_lshlrev_b32 v2, 2, v2
    v_and_b32 v3, 7, v{L}
    v_xor_b32 v2, v2, v3
    v_lshl_add_u32 v{dst}, v2, 4, v1""")


def gemm_dma(a, nsub, stage, stage_bytes, asrd, voa):
    for i in range(4):
        a(f"""s_add_u32 m0, s{S_MW}, {stage*stage_bytes + i*4096}
        s_nop 0
        buffer_load_dwordx4 v{voa}, s[{asrd}:{asrd+3}], s{S_SA+i} offen lds""")
    for s in range(nsub):
        bs = S_B0 if s == 0 else S_B1
        for i in range(2):
            a(f"""s_add_u32 m0, s{S_MW}, {stage*stage_bytes + 16384 + s*8192 + i*4096}
            s_nop 0
            buffer_load_dwordx4 v{V_OB}, s[{bs}:{bs+3}], s{S_SB+2*s+i} offen lds""")
    for i in range(4):
        a(f"s_add_u32 s{S_SA+i}, s{S_SA+i}, 128")
    for i in range(2 * nsub):
        a(f"s_add_u32 s{S_SB+i}, s{S_SB+i}, s{S_SBINC}")


def gemm_reads(a, nsub, stage, stage_bytes, kk, fset):
    for t in range(2):
        r = V_AF + fset * 8 + t * 4
        a(f"ds_read_b128 v[{r}:{r+3}], v{V_VA+kk} offset:{stage*stage_bytes + t*4096}")
    for s in range(nsub):
        for half in range(2):
            r = V_BF + fset * 8 + s * 4 + half * 2
            a(f"ds_read_b64_tr_b16 v[{r}:{r+1}], v{V_VB} offset:{stage*stage_bytes + s*8192 + (16*kk+4*half)*128}")


def gemm_compute(a, nsub, stage, stage_bytes, swapped):
    nr = 2 + 2 * nsub
    gemm_reads(a, nsub, stage, stage_bytes, 0, 0)
    for kk in range(4):
        if kk < 3:
            gemm_reads(a, nsub, stage, stage_bytes, kk + 1, (kk + 1) & 1)
            a(f"s_waitcnt lgkmcnt({nr})")
        else:
            a("s_waitcnt lgkmcnt(0)")
        fs = kk & 1
        for t in range(2):
            for s in range(nsub):
                d = V_ACC + 16 * (t * nsub + s)
                af = V_AF + fs * 8 + t * 4
                bf = V_BF + fs * 8 + s * 4
                x, y = (bf, af) if swapped else (af, bf)
                a(f"v_mfma_f32_32x32x16_bf16 v[{d}:{d+15}], v[{x}:{x+3}], v[{y}:{y+3}], v[{d}:{d+15}]")


def gemm_loop(a, tag, nsub, swapped, nsteps, asrd, voa):
    sb = 16384 + nsub * 8192
    sb = 32768
    gemm_dma(a, nsub, 0, sb, asrd, voa)
    a(f"s_mov_b32 s{S_CNT}, {nsteps}")
    a.label(f"{tag}_loop")
    for stage in range(2):
        a(f"""s_waitcnt vmcnt(0)
        s_barrier
        s_cmp_eq_u32 s{S_CNT}, 1
        s_cbranch_scc1 {tag}_nodma{stage}""")
        gemm_dma(a, nsub, stage ^ 1, sb, asrd, voa)
        a.label(f"{tag}_nodma{stage}")
        gemm_compute(a, nsub, stage, sb, swapped)
        a(f"""s_sub_u32 s{S_CNT}, s{S_CNT}, 1
        s_cmp_eq_u32 s{S_CNT}, 0""")
        if stage == 0:
            a(f"s_cbranch_scc1 {tag}_done")
        else:
            a(f"s_cbranch_scc0 {tag}_loop")
    a.label(f"{tag}_done")
    a("""s_nop 15
    s_nop 3""")


def zero_acc(a, n):
    for i in range(n):
        a(f"v_mov_b32 v{V_ACC+i}, 0")


def gen_gemm1(a):
    kernel_head(a, "gemm1_kernel")
    nsub = 2
    a("""s_cmp_ge_u32 s2, 672
    s_cbranch_scc1 g1_end
    s_load_dwordx2 s[4:5], s[0:1], 8
    s_load_dwordx2 s[6:7], s[0:1], 72
    s_load_dwordx4 s[24:27], s[0:1], 32""")
    gemm_setup(a, nsub)
    a("s_waitcnt lgkmcnt(0)")
    srd(a, S_WS, 6, 7, WS_BYTES)
    srd(a, S_ASRD, 6, 7, WS_BYTES)
    a("""s_cmp_lt_u32 s2, 240
    s_cbranch_scc1 g1_qkv""")
    a("""s_sub_u32 s3, s2, 240
    s_mov_b32 s4, 159072863
    s_mul_hi_u32 s5, s3, s4
    s_mul_i32 s4, s5, 27
    s_sub_u32 s4, s3, s4""")
    srd(a, S_B0, 24, 25, 640 * 1728 * 2)
    srd(a, S_B1, 26, 27, 640 * 1728 * 2)
    a("""s_lshl_b32 s6, s4, 7
    s_mov_b32 s7, s6
    s_mov_b32 s44, 3456
    s_mov_b32 s45, 2
    s_branch g1_common""")
    a.label("g1_qkv")
    a("""s_mov_b32 s6, 286331154
    s_mul_hi_u32 s3, s2, s6
    s_mul_i32 s6, s3, 15
    s_sub_u32 s6, s2, s6""")
    srd(a, S_B0, 4, 5, 640 * 1920 * 2)
    srd(a, S_B1, 4, 5, 640 * 1920 * 2)
    a("""s_mov_b32 s5, s3
    s_mov_b32 s4, s6
    s_lshl_b32 s6, s4, 8
    s_add_u32 s7, s6, 128
    s_mov_b32 s44, 3840
    s_mov_b32 s45, 0
    s_cmp_ge_u32 s4, 10
    s_cselect_b32 s45, 1, s45""")
    a.label("g1_common")
    a(f"""s_lshl_b32 s{S_M0}, s5, 7
    s_lshl_b32 s{S_SBINC}, s44, 6""")
    gemm_voffA(a, V_OA, 1280)
    gemm_voffB(a, V_OB, 44)
    for i in range(4):
        a(f"""s_lshl_b32 s3, s{S_W}, 3
        s_add_u32 s3, s3, {32*i}
        s_add_u32 s3, s3, s{S_M0}
        s_mul_i32 s{S_SA+i}, s3, 1280""")
    for s in range(2):
        for i in range(2):
            a(f"""s_lshl_b32 s3, s{S_W}, 3
            s_add_u32 s3, s3, {32*i}
            s_mul_i32 s3, s3, s44
            s_add_u32 s{S_SB+2*s+i}, s3, s{6+s}""")
    zero_acc(a, 64)
    a("""s_cmp_eq_u32 s45, 1
    s_cbranch_scc1 g1_vloop""")
    gemm_loop(a, "g1s", nsub, True, 10, S_ASRD, V_OA)
    a("""s_cmp_eq_u32 s45, 2
    s_cbranch_scc1 g1_epi_ffn""")

    L = V_LANE
    a(f"""s_lshl_b32 s3, s4, 7
    s_mov_b32 s46, {WS_Q}
    s_mov_b32 s47, {hex(f2u(QSCALE))}
    s_cmp_ge_u32 s4, 5
    s_cbranch_scc0 g1_isq
    s_sub_u32 s3, s3, 640
    s_mov_b32 s46, {WS_K}
    s_mov_b32 s47, 1.0""")
    a.label("g1_isq")
    a(f"""s_lshl_b32 s6, s{S_WN}, 5
    s_add_u32 s3, s3, s6
    v_lshrrev_b32 v1, 5, v{L}
    v_lshlrev_b32 v1, 2, v1
    v_add_u32 v1, s3, v1
    v_and_b32 v2, 31, v{L}
    s_lshl_b32 s6, s{S_WM}, 6
    s_add_u32 s6, s6, s{S_M0}
    v_add_u32 v2, s6, v2
    v_lshlrev_b32 v2, 6, v2
    s_movk_i32 s7, 3277
    s_movk_i32 s48, 20""")
    for s in range(2):
        for g in range(4):
            a(f"""v_add_u32 v3, {s*64+8*g}, v1
            v_mul_lo_u32 v4, v3, s7
            v_lshrrev_b32 v4, 16, v4
            v_mul_lo_u32 v5, v4, s48
            v_sub_u32 v5, v3, v5
            v_lshlrev_b32 v4, 17, v4
            v_lshl_add_u32 v4, v5, 1, v4
            v_add_u32 v4, v4, v2""")
            for t in range(2):
                d = V_ACC + 16 * (t * 2 + s) + 4 * g
                a(f"""v_mul_f32 v6, s47, v{d}
                v_mul_f32 v7, s47, v{d+1}
                v_mul_f32 v8, s47, v{d+2}
                v_mul_f32 v9, s47, v{d+3}
                v_cvt_pk_bf16_f32 v{10+2*t}, v6, v7
                v_cvt_pk_bf16_f32 v{11+2*t}, v8, v9
                buffer_store_dwordx2 v[{10+2*t}:{11+2*t}], v4, s[{S_WS}:{S_WS+3}], s46 offen offset:{t*2048}""")
    a("s_branch g1_end")

    a.label("g1_epi_ffn")
    a(f"""v_and_b32 v2, 31, v{L}
    s_lshl_b32 s6, s{S_WM}, 6
    s_add_u32 s6, s6, s{S_M0}
    v_add_u32 v2, s6, v2
    s_movk_i32 s7, 3456
    v_mul_lo_u32 v2, v2, s7
    v_lshrrev_b32 v1, 5, v{L}
    v_lshlrev_b32 v1, 3, v1
    v_add_u32 v2, v2, v1
    s_lshl_b32 s3, s4, 7
    s_lshl_b32 s6, s{S_WN}, 6
    s_add_u32 s3, s3, s6
    s_add_u32 s3, s3, {WS_H}
    s_mov_b32 s46, {hex(f2u(0.044715))}
    s_mov_b32 s47, {hex(f2u(-2.0*0.7978845608028654*1.4426950408889634))}""")
    for t in range(2):
        for g in range(4):
            outs = []
            for e in range(4):
                gi = V_ACC + 16 * (t * 2 + 0) + 4 * g + e
                ui = V_ACC + 16 * (t * 2 + 1) + 4 * g + e
                bf16r(a, 3, gi)
                a(f"""v_mul_f32 v4, v3, v3
                v_mul_f32 v4, s46, v4
                v_fma_f32 v4, v4, v3, v3
                v_mul_f32 v4, s47, v4
                v_exp_f32 v4, v4
                s_nop 0
                v_add_f32 v4, 1.0, v4
                v_rcp_f32 v4, v4
                s_nop 0
                v_mul_f32 v4, v4, v3""")
                bf16r(a, 4, 4)
                bf16r(a, 5, ui)
                a(f"v_mul_f32 v{6+e}, v4, v5")
            a(f"""v_cvt_pk_bf16_f32 v10, v6, v7
            v_cvt_pk_bf16_f32 v11, v8, v9
            buffer_store_dwordx2 v[10:11], v2, s[{S_WS}:{S_WS+3}], s3 offen offset:{g*16}""")
            if g == 3 and t == 0:
                a(f"v_add_u32 v2, {32*3456}, v2")
    a("s_branch g1_end")

    a.label("g1_vloop")
    gemm_loop(a, "g1n", nsub, False, 10, S_ASRD, V_OA)
    a(f"""s_sub_u32 s3, s4, 10
    s_lshl_b32 s3, s3, 7
    s_lshl_b32 s6, s{S_WN}, 5
    s_add_u32 s3, s3, s6
    v_and_b32 v1, 31, v{L}
    v_add_u32 v1, s3, v1
    v_lshrrev_b32 v2, 5, v{L}
    v_lshlrev_b32 v2, 4, v2
    s_lshl_b32 s6, s{S_WM}, 6
    s_add_u32 s6, s6, s{S_M0}
    s_lshl_b32 s6, s6, 1
    s_add_u32 s6, s6, {WS_VT}
    s_movk_i32 s7, 3277
    s_movk_i32 s48, 20""")
    for s in range(2):
        a(f"""v_add_u32 v3, {s*64}, v1
        v_mul_lo_u32 v4, v3, s7
        v_lshrrev_b32 v4, 16, v4
        v_mul_lo_u32 v5, v4, s48
        v_sub_u32 v5, v3, v5
        v_lshl_add_u32 v4, v4, 5, v5
        v_lshl_add_u32 v4, v4, 12, v2""")
        for t in range(2):
            for g in range(4):
                d = V_ACC + 16 * (t * 2 + s) + 4 * g
                off = (t * 32 + (g & 1) * 4 + (g >> 1) * 16) * 2
                r = 10 + 2 * (g & 1)
                a(f"""v_cvt_pk_bf16_f32 v{r}, v{d}, v{d+1}
                v_cvt_pk_bf16_f32 v{r+1}, v{d+2}, v{d+3}
                buffer_store_dwordx2 v[{r}:{r+1}], v4, s[{S_WS}:{S_WS+3}], s6 offen offset:{off}""")
    a.label("g1_end")
    a("s_endpgm")


def gen_attn(a):
    kernel_head(a, "attn_kernel")
    Q1, Q2, KF, VF, S, P, O = 16, 20, 24, 32, 40, 56, 64
    VKA, VVA = 80, 82
    VOK, VOV = 90, 91
    VMAX, VT, VM, VTMP, VTM2, VXA, VLT32 = 92, 93, 94, 95, 96, 97, 98
    a("""s_cmp_ge_u32 s2, 512
    s_cbranch_scc1 at_end
    s_load_dwordx2 s[6:7], s[0:1], 72
    v_and_b32 v2, 63, v0
    v_lshrrev_b32 v1, 6, v0
    s_nop 0
    v_readfirstlane_b32 s20, v1
    s_lshr_b32 s21, s2, 4
    s_and_b32 s22, s2, 15
    s_lshl_b32 s22, s22, 7
    s_lshl_b32 s3, s20, 5
    s_add_u32 s22, s22, s3
    s_lshl_b32 s38, s20, 10
    s_waitcnt lgkmcnt(0)""")
    srd(a, 8, 6, 7, WS_BYTES)
    a(f"""v_and_b32 v1, 31, v2
    v_add_u32 v1, s22, v1
    v_lshlrev_b32 v1, 6, v1
    v_lshrrev_b32 v3, 5, v2
    v_lshl_add_u32 v1, v3, 4, v1
    s_lshl_b32 s3, s21, 17
    s_add_u32 s3, s3, {WS_Q}
    buffer_load_dwordx4 v[{Q1}:{Q1+3}], v1, s[8:11], s3 offen
    buffer_load_dwordx4 v[{Q2}:{Q2+3}], v1, s[8:11], s3 offen offset:32""")
    a(f"""v_lshrrev_b32 v1, 2, v2
    v_lshlrev_b32 v1, 6, v1
    v_and_b32 v3, 3, v2
    v_bfe_u32 v4, v2, 4, 2
    v_xor_b32 v3, v3, v4
    v_lshl_add_u32 v{VOK}, v3, 4, v1
    v_lshrrev_b32 v1, 4, v2
    v_and_b32 v3, 15, v2
    v_xor_b32 v3, v3, v1
    s_lshl_b32 s3, s20, 2
    s_and_b32 s3, s3, 12
    v_xor_b32 v3, s3, v3
    v_lshlrev_b32 v1, 12, v1
    v_lshl_add_u32 v{VOV}, v3, 4, v1""")
    for i in range(2):
        a(f"""s_lshl_b32 s3, s21, 11
        s_lshl_b32 s4, s20, 4
        s_add_u32 s3, s3, s4
        s_add_u32 s3, s3, {64*i}
        s_lshl_b32 s3, s3, 6
        s_add_u32 s{28+i}, s3, {WS_K}
        s_lshl_b32 s3, s21, 5
        s_lshl_b32 s4, s20, 2
        s_add_u32 s3, s3, s4
        s_add_u32 s3, s3, {16*i}
        s_lshl_b32 s3, s3, 12
        s_add_u32 s{30+i}, s3, {WS_VT}""")
    for mf in range(2):
        a(f"""v_and_b32 v1, 31, v2
        v_lshrrev_b32 v3, 5, v2
        v_add_u32 v3, {2*mf}, v3
        v_bfe_u32 v4, v2, 2, 2
        v_xor_b32 v3, v3, v4
        v_lshlrev_b32 v1, 6, v1
        v_lshl_add_u32 v{VKA+mf}, v3, 4, v1""")
    for tt in range(4):
        for mf in range(2):
            a(f"""v_and_b32 v1, 31, v2
            v_lshrrev_b32 v3, 5, v2
            v_add_u32 v3, {tt*4+2*mf}, v3
            v_and_b32 v4, 15, v2
            v_xor_b32 v3, v3, v4
            v_lshlrev_b32 v1, 8, v1
            v_lshl_add_u32 v1, v3, 4, v1
            v_add_u32 v{VVA+tt*2+mf}, 8192, v1""")
    a(f"""v_xor_b32 v{VXA}, 32, v2
    v_lshlrev_b32 v{VXA}, 2, v{VXA}
    v_mov_b32 v{VT}, 0xff800000
    v_mov_b32 v{VM}, 0
    v_cmp_gt_u32 vcc, 32, v2
    s_nop 1
    v_cndmask_b32 v{VLT32}, 0, -1, vcc""")
    for i in range(16):
        a(f"v_mov_b32 v{O+i}, 0")

    def dma(stage):
        for i in range(2):
            a(f"""s_add_u32 m0, s38, {stage*16384 + i*4096}
            s_nop 0
            buffer_load_dwordx4 v{VOK}, s[8:11], s{28+i} offen lds""")
        for i in range(2):
            a(f"""s_add_u32 m0, s38, {stage*16384 + 8192 + i*4096}
            s_nop 0
            buffer_load_dwordx4 v{VOV}, s[8:11], s{30+i} offen lds""")
        a("""s_add_u32 s28, s28, 8192
        s_add_u32 s29, s29, 8192
        s_add_u32 s30, s30, 256
        s_add_u32 s31, s31, 256""")

    dma(0)
    a(f"""s_waitcnt vmcnt(4)
    v_and_b32 v{Q2}, v{Q2}, v{VLT32}
    v_and_b32 v{Q2+1}, v{Q2+1}, v{VLT32}
    v_mov_b32 v{Q2+2}, 0
    v_mov_b32 v{Q2+3}, 0
    s_mov_b32 s37, 16""")
    a.label("at_loop")
    for stage in range(2):
        a(f"""s_waitcnt vmcnt(0)
        s_barrier
        s_cmp_eq_u32 s37, 1
        s_cbranch_scc1 at_nodma{stage}""")
        dma(stage ^ 1)
        a.label(f"at_nodma{stage}")
        for tt in range(4):
            tag = f"{stage}_{tt}"
            for mf in range(2):
                a(f"ds_read_b128 v[{KF+4*mf}:{KF+4*mf+3}], v{VKA+mf} offset:{stage*16384 + tt*2048}")
            for mf in range(2):
                a(f"ds_read_b128 v[{VF+4*mf}:{VF+4*mf+3}], v{VVA+tt*2+mf} offset:{stage*16384}")
            a(f"""s_waitcnt lgkmcnt(2)
            v_mfma_f32_32x32x16_bf16 v[{S}:{S+15}], v[{KF}:{KF+3}], v[{Q1}:{Q1+3}], 0
            v_mfma_f32_32x32x16_bf16 v[{S}:{S+15}], v[{KF+4}:{KF+7}], v[{Q2}:{Q2+3}], v[{S}:{S+15}]
            s_nop 15
            s_nop 1
            v_max3_f32 v{VMAX}, v{S}, v{S+1}, v{S+2}
            v_max3_f32 v{VTMP}, v{S+3}, v{S+4}, v{S+5}
            v_max3_f32 v{VMAX}, v{VMAX}, v{S+6}, v{S+7}
            v_max3_f32 v{VTMP}, v{VTMP}, v{S+8}, v{S+9}
            v_max3_f32 v{VMAX}, v{VMAX}, v{S+10}, v{S+11}
            v_max3_f32 v{VTMP}, v{VTMP}, v{S+12}, v{S+13}
            v_max3_f32 v{VMAX}, v{VMAX}, v{S+14}, v{S+15}
            v_max_f32 v{VMAX}, v{VMAX}, v{VTMP}
            v_cmp_gt_f32 vcc, v{VMAX}, v{VT}
            s_cbranch_vccnz at_resc{tag}""")
            a.label(f"at_back{tag}")
            for i in range(16):
                a(f"v_exp_f32 v{S+i}, v{S+i}")
            a("s_nop 0")
            for i in range(8):
                a(f"v_cvt_pk_bf16_f32 v{P+i}, v{S+2*i}, v{S+2*i+1}")
            a(f"""s_waitcnt lgkmcnt(0)
            s_nop 0
            v_mfma_f32_32x32x16_bf16 v[{O}:{O+15}], v[{VF}:{VF+3}], v[{P}:{P+3}], v[{O}:{O+15}]
            v_mfma_f32_32x32x16_bf16 v[{O}:{O+15}], v[{VF+4}:{VF+7}], v[{P+4}:{P+7}], v[{O}:{O+15}]""")
        a("""s_sub_u32 s37, s37, 1
        s_cmp_eq_u32 s37, 0""")
        if stage == 0:
            a("s_cbranch_scc1 at_done")
        else:
            a("s_cbranch_scc0 at_loop")
    a.label("at_done")
    a(f"""s_nop 15
    s_nop 3
    v_or_b32 v1, 32, v2
    v_lshlrev_b32 v1, 2, v1
    ds_bpermute_b32 v{VTMP}, v1, v{O+8}
    s_waitcnt lgkmcnt(0)
    v_rcp_f32 v{VTM2}, v{VTMP}
    s_nop 0
    v_fma_f32 v3, -v{VTMP}, v{VTM2}, 1.0
    v_fma_f32 v{VTM2}, v3, v{VTM2}, v{VTM2}
    v_and_b32 v1, 31, v2
    v_add_u32 v1, s22, v1
    s_movk_i32 s3, 1280
    v_mul_lo_u32 v1, v1, s3
    v_lshrrev_b32 v3, 5, v2
    v_lshl_add_u32 v1, v3, 3, v1
    s_mul_i32 s3, s21, 40
    s_add_u32 s3, s3, {WS_O}""")
    for g in range(3):
        for e in range(4):
            a(f"v_mul_f32 v{4+e}, v{O+4*g+e}, v{VTM2}")
        a("""v_cvt_pk_bf16_f32 v8, v4, v5
        v_cvt_pk_bf16_f32 v9, v6, v7""")
        if g == 2:
            a("""v_cmp_gt_u32 vcc, 32, v2
            s_and_saveexec_b64 s[24:25], vcc""")
        a(f"buffer_store_dwordx2 v[8:9], v1, s[8:11], s3 offen offset:{16*g}")
        if g == 2:
            a("s_mov_b64 exec, s[24:25]")
        a("s_nop 1")
    a("s_branch at_end")
    for stage in range(2):
        for tt in range(4):
            tag = f"{stage}_{tt}"
            a.label(f"at_resc{tag}")
            a(f"""ds_bpermute_b32 v{VTMP}, v{VXA}, v{VMAX}
            s_waitcnt lgkmcnt(0)
            v_max_f32 v{VMAX}, v{VMAX}, v{VTMP}
            v_cmp_gt_f32 vcc, v{VMAX}, v{VT}
            s_nop 1
            v_cndmask_b32 v{VMAX}, 0, v{VMAX}, vcc
            v_add_f32 v{VTMP}, v{VM}, v{VMAX}""")
            bf16r(a, VTMP, VTMP)
            a(f"""v_sub_f32 v{VMAX}, v{VTMP}, v{VM}
            v_mov_b32 v{VM}, v{VTMP}
            v_max_f32 v{VTM2}, 0, v{VMAX}
            v_sub_f32 v{VTM2}, 0, v{VTM2}
            v_exp_f32 v{VTM2}, v{VTM2}
            v_lshrrev_b32 v{VTMP}, 16, v{VTMP}
            v_xor_b32 v{VTMP}, 0x8000, v{VTMP}
            v_and_b32 v{Q2+2}, v{VTMP}, v{VLT32}
            v_mov_b32 v{VT}, 0x41000000
            s_nop 7""")
            for i in range(16):
                a(f"v_mul_f32 v{O+i}, v{O+i}, v{VTM2}")
            for i in range(16):
                a(f"v_sub_f32 v{S+i}, v{S+i}, v{VMAX}")
            a(f"s_branch at_back{tag}")
    a.label("at_end")
    a("s_endpgm")


def gen_gemm2(a):
    kernel_head(a, "gemm2_kernel")
    nsub = 1
    V_OA2 = 24
    SAVE = 96
    a("""s_cmp_ge_u32 s2, 160
    s_cbranch_scc1 g2_end
    s_load_dwordx2 s[4:5], s[0:1], 16
    s_load_dwordx2 s[6:7], s[0:1], 72
    s_load_dwordx2 s[24:25], s[0:1], 48
    s_load_dwordx2 s[26:27], s[0:1], 0
    s_load_dwordx2 s[50:51], s[0:1], 56""")
    gemm_setup(a, nsub)
    a("s_waitcnt lgkmcnt(0)")
    srd(a, S_WS, 6, 7, WS_BYTES)
    srd(a, S_ASRD, 6, 7, WS_BYTES)
    srd(a, S_B0, 4, 5, 640 * 640 * 2)
    srd(a, 52, 26, 27, 2621440)
    srd(a, 56, 50, 51, 2621440)
    a(f"""s_mov_b32 s4, 429496730
    s_mul_hi_u32 s5, s2, s4
    s_mul_i32 s4, s5, 10
    s_sub_u32 s4, s2, s4
    s_lshl_b32 s{S_M0}, s5, 7
    s_movk_i32 s44, 1280
    s_lshl_b32 s{S_SBINC}, s44, 6""")
    gemm_voffA(a, V_OA, 1280)
    gemm_voffA(a, V_OA2, 3456)
    gemm_voffB(a, V_OB, 44)

    def set_offsets(lda, abase):
        for i in range(4):
            a(f"""s_lshl_b32 s3, s{S_W}, 3
            s_add_u32 s3, s3, {32*i}
            s_add_u32 s3, s3, s{S_M0}
            s_mul_i32 s3, s3, {lda}
            s_add_u32 s{S_SA+i}, s3, {abase}""")
        for i in range(2):
            a(f"""s_lshl_b32 s3, s{S_W}, 3
            s_add_u32 s3, s3, {32*i}
            s_mul_i32 s3, s3, 1280
            s_lshl_b32 s6, s4, 7
            s_add_u32 s{S_SB+i}, s3, s6""")

    L = V_LANE
    a(f"""v_and_b32 v2, 31, v{L}
    s_lshl_b32 s6, s{S_WM}, 6
    s_add_u32 s6, s6, s{S_M0}
    v_add_u32 v2, s6, v2
    s_movk_i32 s7, 1280
    v_mul_lo_u32 v2, v2, s7
    v_lshrrev_b32 v1, 5, v{L}
    v_lshlrev_b32 v1, 3, v1
    v_add_u32 v25, v2, v1
    s_lshl_b32 s3, s4, 7
    s_lshl_b32 s6, s{S_WN}, 6
    s_add_u32 s49, s3, s6""")
    set_offsets(1280, WS_O)
    zero_acc(a, 32)
    gemm_loop(a, "g2a", nsub, True, 10, S_ASRD, V_OA)
    a(f"v_add_u32 v26, {32*1280}, v25")
    for t in range(2):
        for g in range(4):
            a(f"buffer_load_dwordx2 v[{2+2*g}:{3+2*g}], v{25+t}, s[52:55], s49 offen offset:{g*16}")
        a("s_waitcnt vmcnt(0)")
        for g in range(4):
            for e in range(4):
                acc = V_ACC + 16 * t + 4 * g + e
                sv = SAVE + 16 * t + 4 * g + e
                xr = 2 + 2 * g + (e >> 1)
                bf16r(a, 10, acc)
                if e & 1:
                    a(f"v_and_b32 v11, 0xffff0000, v{xr}")
                else:
                    a(f"v_lshlrev_b32 v11, 16, v{xr}")
                a("v_add_f32 v10, v10, v11")
                bf16r(a, sv, 10)
    zero_acc(a, 32)
    a(f"""s_mov_b32 s{S_B0}, s24
    s_and_b32 s{S_B0+1}, s25, 0xffff
    s_mov_b32 s{S_B0+2}, {1728*640*2}""")
    set_offsets(3456, WS_H)
    gemm_loop(a, "g2b", nsub, True, 27, S_ASRD, V_OA2)
    for t in range(2):
        for g in range(4):
            for e in range(4):
                acc = V_ACC + 16 * t + 4 * g + e
                sv = SAVE + 16 * t + 4 * g + e
                bf16r(a, 10, acc)
                a(f"v_add_f32 v{4+e}, v10, v{sv}")
            r = 12 + 2 * (g & 1)
            a(f"""v_cvt_pk_bf16_f32 v{r}, v4, v5
            v_cvt_pk_bf16_f32 v{r+1}, v6, v7""")
            vaddr = 25 if t == 0 else 26
            a(f"buffer_store_dwordx2 v[{r}:{r+1}], v{vaddr}, s[56:59], s49 offen offset:{g*16}")
    a.label("g2_end")
    a("s_endpgm")


def kd(name, vgpr, sgpr=102):
    acc = (vgpr + 3) // 4 * 4
    return f""".amdhsa_kernel {name}
  .amdhsa_next_free_vgpr {vgpr}
  .amdhsa_next_free_sgpr {sgpr}
  .amdhsa_accum_offset {acc}
  .amdhsa_group_segment_fixed_size 0
  .amdhsa_kernarg_size 80
  .amdhsa_user_sgpr_count 2
  .amdhsa_user_sgpr_kernarg_segment_ptr 1
  .amdhsa_system_sgpr_workgroup_id_x 1
.end_amdhsa_kernel"""


def main():
    hdr = open(f"cdna_kernels/{NAME}.s.ref").read().split("\n")
    head = [l for l in hdr if l.startswith(";") and "@launch" not in l]
    a = Asm()
    for l in head:
        a.raw(l)
    a.raw("; @launch kernel=ln_kernel grid=(512,1,1) block=(256,1,1) lds=0")
    a.raw("; @launch kernel=gemm1_kernel grid=(672,1,1) block=(256,1,1) lds=65536")
    a.raw("; @launch kernel=attn_kernel grid=(512,1,1) block=(256,1,1) lds=32768")
    a.raw("; @launch kernel=gemm2_kernel grid=(160,1,1) block=(256,1,1) lds=65536")
    a.raw('.amdgcn_target "amdgcn-amd-amdhsa--gfx950"')
    a.raw(".text")
    gen_ln(a)
    gen_gemm1(a)
    gen_attn(a)
    gen_gemm2(a)
    a.raw('.section .rodata,"a"')
    for name, v in (("ln_kernel", 48), ("gemm1_kernel", 128), ("attn_kernel", 104), ("gemm2_kernel", 128)):
        a.raw(".p2align 6")
        a.raw(kd(name, v))
    open(f"cdna_kernels/{NAME}.s", "w").write("\n".join(a.L) + "\n")


if __name__ == "__main__":
    main()
```

```python
import sys

NAME = "parallel_sum__mha_block__glu_gated_geglu__prompt"

WS_XN = 0x0
WS_Q = 0x300000
WS_K = 0x700000
WS_VT = 0xB00000
WS_H = 0xF00000
WS_O = 0x1700000
WS_BR = 0x1A00000
WS_BYTES = 0x10000000

QSCALE = 0.32260095


def f2u(x):
    import struct
    return struct.unpack("<I", struct.pack("<f", x))[0]


class Asm:
    def __init__(self):
        self.L = []

    def __call__(self, s):
        for line in s.strip().split("\n"):
            line = line.strip()
            if line:
                if line.startswith("buffer_") and "offset:" in line:
                    off = int(line.split("offset:")[1].split()[0])
                    assert 0 <= off < 4096, line
                self.L.append("    " + line)

    def label(self, s):
        self.L.append(s + ":")

    def raw(self, s):
        self.L.append(s)


def srd(a, d, lo, hi, nbytes):
    a(f"""s_mov_b32 s{d}, s{lo}
    s_and_b32 s{d+1}, s{hi}, 0xffff
    s_mov_b32 s{d+2}, {nbytes}
    s_mov_b32 s{d+3}, 0x00020000""")


def kernel_head(a, name):
    a.raw(f".globl {name}")
    a.raw(".p2align 8")
    a.raw(f".type {name},@function")
    a.label(name)


def bf16r(a, dst, src):
    a(f"""v_cvt_pk_bf16_f32 v{dst}, v{src}, v{src}
    v_lshlrev_b32 v{dst}, 16, v{dst}""")


def butterfly_sum(a, v, tmp, addr, lane):
    for m in (1, 2, 4, 8, 16, 32):
        a(f"""v_xor_b32 v{addr}, {m}, v{lane}
        v_lshlrev_b32 v{addr}, 2, v{addr}
        ds_bpermute_b32 v{tmp}, v{addr}, v{v}
        s_waitcnt lgkmcnt(0)
        v_add_f32 v{v}, v{v}, v{tmp}""")


def gen_ln(a):
    kernel_head(a, "ln_kernel")
    a("""s_cmp_ge_u32 s2, 512
    s_cbranch_scc1 ln_end
    s_load_dwordx2 s[4:5], s[0:1], 0
    s_load_dwordx2 s[6:7], s[0:1], 72
    v_lshrrev_b32 v1, 6, v0
    v_and_b32 v2, 63, v0
    s_nop 0
    v_readfirstlane_b32 s8, v1
    s_lshl_b32 s9, s2, 2
    s_add_u32 s9, s9, s8
    s_mul_i32 s10, s9, 1280
    s_waitcnt lgkmcnt(0)""")
    srd(a, 12, 4, 5, 2621440)
    srd(a, 16, 6, 7, WS_BYTES)
    a("v_lshlrev_b32 v3, 2, v2")
    for i in range(5):
        a(f"buffer_load_dword v{10+i}, v3, s[12:15], s10 offen offset:{256*i}")
    a("s_waitcnt vmcnt(0)")
    for i in range(5):
        a(f"""v_lshlrev_b32 v{20+2*i}, 16, v{10+i}
        v_and_b32 v{21+2*i}, 0xffff0000, v{10+i}""")
    a("v_add_f32 v30, v20, v21")
    for i in range(2, 10):
        a(f"v_add_f32 v30, v30, v{20+i}")
    butterfly_sum(a, 30, 40, 41, 2)
    a(f"v_mul_f32 v31, {hex(f2u(1.0/640))}, v30")
    a("v_mov_b32 v32, 0")
    for i in range(10):
        a(f"""v_sub_f32 v33, v{20+i}, v31
        v_fmac_f32 v32, v33, v33""")
    butterfly_sum(a, 32, 40, 41, 2)
    a(f"v_mul_f32 v32, {hex(f2u(1.0/640))}, v32")
    bf16r(a, 34, 31)
    bf16r(a, 35, 32)
    a(f"v_add_f32 v35, {hex(f2u(1e-5))}, v35")
    bf16r(a, 35, 35)
    a("v_sqrt_f32 v35, v35")
    a("s_nop 0")
    bf16r(a, 35, 35)
    a("v_rcp_f32 v36, v35")
    a("s_nop 0")
    for i in range(10):
        a(f"v_sub_f32 v{20+i}, v{20+i}, v34")
        bf16r(a, 20 + i, 20 + i)
        a(f"""v_mul_f32 v37, v{20+i}, v36
        v_fma_f32 v38, -v37, v35, v{20+i}
        v_fma_f32 v{20+i}, v38, v36, v37""")
    for i in range(5):
        a(f"v_cvt_pk_bf16_f32 v{10+i}, v{20+2*i}, v{21+2*i}")
    for i in range(5):
        a(f"buffer_store_dword v{10+i}, v3, s[16:19], s10 offen offset:{256*i}")
    a(f"""v_lshlrev_b32 v4, 17, v2
    s_lshl_b32 s11, s9, 6
    s_add_u32 s11, s11, {WS_K + 40}
    v_mov_b32 v6, 0x3f80
    v_mov_b32 v7, 0
    v_mov_b32 v8, 0
    v_mov_b32 v9, 0
    v_cmp_gt_u32 vcc, 32, v2
    s_and_saveexec_b64 s[20:21], vcc
    buffer_store_dwordx2 v[6:7], v4, s[16:19], s11 offen
    buffer_store_dwordx2 v[8:9], v4, s[16:19], s11 offen offset:8
    buffer_store_dwordx2 v[8:9], v4, s[16:19], s11 offen offset:16
    s_mov_b64 exec, s[20:21]""")
    a(f"""s_lshr_b32 s22, s9, 6
    s_and_b32 s23, s9, 63
    s_mul_i32 s23, s23, 48
    s_lshl_b32 s22, s22, 17
    s_add_u32 s22, s22, {WS_VT + 20*4096}
    v_add_u32 v4, s23, v2
    v_mov_b32 v5, 0x3f803f80
    v_cmp_gt_u32 vcc, 256, v4
    s_nop 1
    v_cndmask_b32 v6, 0, v5, vcc
    v_mov_b32 v7, v6
    v_mov_b32 v8, v6
    v_mov_b32 v9, v6
    v_lshlrev_b32 v4, 4, v4
    v_cmp_gt_u32 vcc, 48, v2
    s_and_saveexec_b64 s[20:21], vcc
    buffer_store_dwordx4 v[6:9], v4, s[16:19], s22 offen
    s_mov_b64 exec, s[20:21]""")
    a.label("ln_end")
    a("s_endpgm")


NST = 5 if '--nst5' in sys.argv else 4
STG = 16384
V_ACC = 64
V_AF = 32
V_BF = 48
V_VA = 16
V_VB = 20
V_OA = 21
V_OB = 22
V_LANE = 23
S_WS = 8
S_B0 = 12
S_B1 = 16
S_W = 20
S_WM = 21
S_WN = 22
S_M0 = 23
S_SA = 28
S_SB = 32
S_SBINC = 36
S_CNT = 37
S_MW = 38
S_ASRD = 40


def gemm_setup(a, nsub):
    a(f"""v_and_b32 v{V_LANE}, 63, v0
    v_lshrrev_b32 v1, 6, v0
    s_nop 0
    v_readfirstlane_b32 s{S_W}, v1
    s_lshr_b32 s{S_WM}, s{S_W}, 1
    s_and_b32 s{S_WN}, s{S_W}, 1
    s_lshl_b32 s{S_MW}, s{S_W}, 10""")
    L = V_LANE
    a(f"""v_and_b32 v1, 31, v{L}
    s_lshl_b32 s3, s{S_WM}, 6
    v_add_u32 v1, s3, v1
    v_lshlrev_b32 v1, 6, v1
    v_lshrrev_b32 v2, 5, v{L}
    v_bfe_u32 v3, v{L}, 2, 2""")
    for kk in range(2):
        a(f"""v_add_u32 v4, {2*kk}, v2
        v_xor_b32 v4, v4, v3
        v_lshl_add_u32 v{V_VA+kk}, v4, 4, v1""")
    a(f"""v_lshrrev_b32 v1, 5, v{L}
    v_lshlrev_b32 v1, 3, v1
    v_bfe_u32 v2, v{L}, 2, 2
    v_add_u32 v1, v1, v2
    v_lshlrev_b32 v1, 7, v1
    v_bfe_u32 v2, v{L}, 4, 1
    v_lshlrev_b32 v2, 1, v2
    v_bfe_u32 v3, v{L}, 1, 1
    v_add_u32 v2, v2, v3
    s_lshl_b32 s3, s{S_WN}, 2
    v_add_u32 v2, s3, v2
    v_bfe_u32 v3, v{L}, 3, 1
    v_lshlrev_b32 v3, 2, v3
    v_xor_b32 v2, v2, v3
    v_lshl_add_u32 v1, v2, 4, v1
    v_and_b32 v2, 1, v{L}
    v_lshl_add_u32 v1, v2, 3, v1
    v_add_u32 v{V_VB}, 8192, v1""")


def gemm_voffA(a, dst, lda):
    L = V_LANE
    a(f"""v_lshrrev_b32 v1, 2, v{L}
    s_mov_b32 s3, {lda}
    v_mul_lo_u32 v1, v1, s3
    v_bfe_u32 v2, v{L}, 4, 2
    v_and_b32 v3, 3, v{L}
    v_xor_b32 v2, v2, v3
    v_lshl_add_u32 v{dst}, v2, 4, v1""")


def gemm_voffB(a, dst, s_ldb):
    L = V_LANE
    a(f"""v_lshrrev_b32 v1, 3, v{L}
    v_mul_lo_u32 v1, v1, s{s_ldb}
    v_bfe_u32 v2, v{L}, 4, 1
    v_lshlrev_b32 v2, 2, v2
    v_and_b32 v3, 7, v{L}
    v_xor_b32 v2, v2, v3
    v_lshl_add_u32 v{dst}, v2, 4, v1""")


def gemm_offsets(a, nsub, lda, abase, s_ldb, s_cols):
    for i in range(2):
        a(f"""s_lshl_b32 s3, s{S_W}, 4
        s_add_u32 s3, s3, {64*i}
        s_add_u32 s3, s3, s{S_M0}
        s_mul_i32 s3, s3, {lda}
        s_add_u32 s{S_SA+i}, s3, {abase}""")
    for s in range(nsub):
        a(f"""s_lshl_b32 s3, s{S_W}, 3
        s_mul_i32 s3, s3, s{s_ldb}
        s_add_u32 s{S_SB+s}, s3, s{s_cols[s]}""")
    a(f"s_lshl_b32 s{S_SBINC}, s{s_ldb}, 5")


def gemm_dma(a, nsub, slot, asrd, voa):
    if "--nodma" in sys.argv:
        return
    for i in range(2):
        if "--noA" in sys.argv:
            continue
        a(f"""s_add_u32 m0, s{S_MW}, {slot*STG + i*4096}
        s_nop 0
        buffer_load_dwordx4 v{voa}, s[{asrd}:{asrd+3}], s{S_SA+i} offen lds""")
    for s in range(nsub):
        if "--noB" in sys.argv:
            continue
        bs = S_B0 if s == 0 else S_B1
        a(f"""s_add_u32 m0, s{S_MW}, {slot*STG + 8192 + s*4096}
        s_nop 0
        buffer_load_dwordx4 v{V_OB}, s[{bs}:{bs+3}], s{S_SB+s} offen lds""")
    for i in range(2):
        a(f"s_add_u32 s{S_SA+i}, s{S_SA+i}, 64")
    for i in range(nsub):
        a(f"s_add_u32 s{S_SB+i}, s{S_SB+i}, s{S_SBINC}")


def gemm_reads(a, nsub, slot, kk):
    if "--noread" in sys.argv:
        return
    for t in range(2):
        r = V_AF + kk * 8 + t * 4
        a(f"ds_read_b128 v[{r}:{r+3}], v{V_VA+kk} offset:{slot*STG + t*2048}")
    for s in range(nsub):
        for half in range(2):
            r = V_BF + kk * 8 + s * 4 + half * 2
            a(f"ds_read_b64_tr_b16 v[{r}:{r+1}], v{V_VB} offset:{slot*STG + s*4096 + kk*2048 + half*512}")


def gemm_mfmas(a, nsub, kk, swapped):
    if "--nomfma" in sys.argv:
        return
    for t in range(2):
        for s in range(nsub):
            d = V_ACC + 16 * (t * nsub + s)
            af = V_AF + kk * 8 + t * 4
            bf = V_BF + kk * 8 + s * 4
            x, y = (bf, af) if swapped else (af, bf)
            a(f"v_mfma_f32_32x32x16_bf16 v[{d}:{d+15}], v[{x}:{x+3}], v[{y}:{y+3}], v[{d}:{d+15}]")


def gemm_loop(a, tag, nsub, swapped, nsteps, asrd, voa):
    U = 2 * nsteps
    npw = 2 + nsub
    if "--noA" in sys.argv:
        npw = nsub
    if "--noB" in sys.argv:
        npw = 2
    nr = 2 + 2 * nsub
    for st in range(min(NST - 1, U)):
        gemm_dma(a, nsub, st % NST, asrd, voa)
    issued = min(NST - 1, U)
    a(f"""s_waitcnt vmcnt({(issued-1)*npw})
    s_barrier""")
    gemm_reads(a, nsub, 0, 0)
    for u in range(U):
        if u + 1 < U:
            a(f"""s_waitcnt vmcnt({(issued-1-(u+1))*npw})
            s_barrier""")
            if issued < U:
                gemm_dma(a, nsub, issued % NST, asrd, voa)
                issued += 1
        gemm_reads(a, nsub, u % NST, 1)
        a(f"s_waitcnt lgkmcnt({nr})")
        gemm_mfmas(a, nsub, 0, swapped)
        if u + 1 < U:
            gemm_reads(a, nsub, (u + 1) % NST, 0)
            a(f"s_waitcnt lgkmcnt({nr})")
        else:
            a("s_waitcnt lgkmcnt(0)")
        gemm_mfmas(a, nsub, 1, swapped)
    a("""s_nop 15
    s_nop 3""")


INSTR = "--instr" in sys.argv


def stamp(a, idx):
    if INSTR:
        a(f"""s_waitcnt lgkmcnt(0)
        s_memtime s[{64+2*idx}:{65+2*idx}]
        s_waitcnt lgkmcnt(0)""")


def stamp_dump(a, n, tag):
    if not INSTR:
        return
    a(f"""s_and_b32 s60, s2, 63
    s_cmp_lg_u32 s60, 0
    s_cbranch_scc1 {tag}_nodump
    s_load_dwordx2 s[60:61], s[0:1], 64
    s_waitcnt lgkmcnt(0)
    s_mov_b32 s84, s60
    s_and_b32 s85, s61, 0xffff
    s_mov_b32 s86, 256
    s_mov_b32 s87, 0x00020000
    s_lshr_b32 s60, s2, 6
    s_mul_i32 s60, s60, {4*n}
    v_cmp_eq_u32 vcc, 0, v0
    s_and_saveexec_b64 s[62:63], vcc
    v_mov_b32 v1, 0""")
    for i in range(n):
        a(f"""v_mov_b32 v2, s{64+2*i}
        buffer_store_dword v2, v1, s[84:87], s60 offen offset:{4*i}""")
    a("s_mov_b64 exec, s[62:63]")
    a.label(f"{tag}_nodump")


def zero_acc(a, n):
    for i in range(n):
        a(f"v_mov_b32 v{V_ACC+i}, 0")


G1_NST = 4
G1_STG = 28672


def gen_gemm1(a):
    kernel_head(a, "gemm1_kernel")
    NSTG, STGB = G1_NST, G1_STG
    ACC = 128
    AF = 64
    BF = 96
    ACC = 144
    VA, VB, OA, OB, L = 16, 17, 18, 19, 20
    SWS, SB0, SB1 = 8, 12, 16
    SW, SWM, SWN, SM0 = 20, 21, 22, 23
    SSA, SSB = 28, 30
    SBINC, SMW = 36, 38
    a("""s_cmp_ge_u32 s2, 256
    s_cbranch_scc1 g1_end
    s_load_dwordx2 s[4:5], s[0:1], 8
    s_load_dwordx2 s[6:7], s[0:1], 72
    s_load_dwordx4 s[24:27], s[0:1], 32""")
    a(f"""v_and_b32 v{L}, 63, v0
    v_lshrrev_b32 v1, 6, v0
    s_nop 0
    v_readfirstlane_b32 s{SW}, v1
    s_lshr_b32 s{SWM}, s{SW}, 1
    s_and_b32 s{SWN}, s{SW}, 1
    s_lshl_b32 s{SMW}, s{SW}, 10""")
    a("""s_and_b32 s3, s2, 7
    s_lshr_b32 s46, s2, 3
    s_lshr_b32 s47, s46, 3
    s_lshl_b32 s47, s47, 3
    s_add_u32 s47, s47, s3
    s_and_b32 s46, s46, 7
    s_cmp_ge_u32 s47, 28
    s_cbranch_scc1 g1_end
    s_waitcnt lgkmcnt(0)""")
    stamp(a, 0)
    srd(a, SWS, 6, 7, WS_BYTES)
    a("""s_cmp_lt_u32 s47, 10
    s_cbranch_scc1 g1_qkv""")
    srd(a, SB0, 24, 25, 640 * 1728 * 2)
    srd(a, SB1, 26, 27, 640 * 1728 * 2)
    a("""s_sub_u32 s4, s47, 10
    s_mul_i32 s6, s4, 192
    s_mov_b32 s7, s6
    s_mov_b32 s44, 3456
    s_mov_b32 s45, 2
    s_branch g1_common""")
    a.label("g1_qkv")
    srd(a, SB0, 4, 5, 640 * 1920 * 2)
    srd(a, SB1, 4, 5, 640 * 1920 * 2)
    a("""s_mov_b32 s4, s47
    s_mul_i32 s6, s4, 384
    s_add_u32 s7, s6, 192
    s_mov_b32 s44, 3840
    s_mov_b32 s45, 0""")
    a.label("g1_common")
    a(f"s_lshl_b32 s{SM0}, s46, 8")
    a(f"""v_and_b32 v1, 15, v{L}
    s_lshl_b32 s3, s{SWM}, 6
    v_add_u32 v1, s3, v1
    v_lshlrev_b32 v1, 6, v1
    v_bfe_u32 v2, v{L}, 2, 2
    v_sub_u32 v2, 4, v2
    v_and_b32 v2, 3, v2
    v_lshrrev_b32 v3, 4, v{L}
    v_xor_b32 v2, v2, v3
    v_lshl_add_u32 v{VA}, v2, 4, v1""")
    for h2 in range(2):
        a(f"""v_lshrrev_b32 v1, 4, v{L}
        v_lshlrev_b32 v1, 3, v1
        v_bfe_u32 v2, v{L}, 2, 2
        v_add_u32 v1, v1, v2
        v_lshlrev_b32 v1, 6, v1
        v_bfe_u32 v2, v{L}, 1, 1
        v_add_u32 v2, {2*h2}, v2
        v_bfe_u32 v3, v{L}, 4, 1
        v_lshlrev_b32 v3, 1, v3
        v_xor_b32 v2, v2, v3
        v_lshl_add_u32 v1, v2, 4, v1
        v_and_b32 v2, 1, v{L}
        v_lshl_add_u32 v1, v2, 3, v1
        v_add_u32 v{21+h2}, 16384, v1""")
    VBH = (21, 22)
    a(f"""v_add_u32 v23, {2*STGB}, v{VA}
    v_add_u32 v29, {2*STGB}, v21
    v_add_u32 v30, {2*STGB}, v22""")
    a(f"""v_lshrrev_b32 v1, 2, v{L}
    s_movk_i32 s3, 1280
    v_mul_lo_u32 v1, v1, s3
    v_bfe_u32 v2, v{L}, 4, 2
    v_sub_u32 v2, 4, v2
    v_and_b32 v2, 3, v2
    v_and_b32 v3, 3, v{L}
    v_xor_b32 v2, v2, v3
    v_lshl_add_u32 v{OA}, v2, 4, v1""")
    a(f"""v_lshrrev_b32 v1, 2, v{L}
    v_mul_lo_u32 v1, v1, s44
    v_lshrrev_b32 v2, 5, v{L}
    v_lshlrev_b32 v2, 1, v2
    v_and_b32 v3, 3, v{L}
    v_xor_b32 v2, v2, v3
    v_lshl_add_u32 v{OB}, v2, 4, v1""")
    for i in range(2):
        a(f"""s_lshl_b32 s3, s{SW}, 4
        s_add_u32 s3, s3, {128*i}
        s_add_u32 s3, s3, s{SM0}
        s_mul_i32 s{SSA+i}, s3, 1280""")
    a(f"""s_lshr_b32 s3, s{SW}, 1
    s_and_b32 s48, s{SW}, 1
    s_lshl_b32 s48, s48, 4
    s_mul_i32 s48, s48, s44
    s_cmp_ge_u32 s3, 3
    s_cselect_b32 s49, s7, s6
    s_cselect_b32 s50, 3, 0
    s_sub_u32 s50, s3, s50
    s_lshl_b32 s50, s50, 6
    s_add_u32 s49, s49, s50
    s_add_u32 s{SSB}, s49, s48
    s_add_u32 s50, s3, 1
    s_lshl_b32 s50, s50, 6
    s_add_u32 s49, s7, s50
    s_add_u32 s{SSB+1}, s49, s48
    s_lshl_b32 s{SBINC}, s44, 5""")
    a(f"""s_cmp_ge_u32 s3, 3
    s_cselect_b32 s52, s{SB1}, s{SB0}
    s_cselect_b32 s53, s{SB1+1}, s{SB0+1}
    s_mov_b32 s54, s{SB0+2}
    s_mov_b32 s55, 0x00020000""")
    if "--nopf" not in sys.argv:
        a(f"""v_and_b32 v1, 31, v{L}
        s_lshl_b32 s3, s{SW}, 5
        s_add_u32 s3, s3, s{SM0}
        v_add_u32 v1, s3, v1
        s_movk_i32 s3, 1280
        v_mul_lo_u32 v1, v1, s3
        v_lshrrev_b32 v2, 5, v{L}
        v_lshl_add_u32 v1, v2, 7, v1""")
        for i in range(5):
            a(f"buffer_load_dword v{96+i}, v1, s[{SWS}:{SWS+3}], 0 offen offset:{256*i}")
        a(f"""v_and_b32 v1, 15, v{L}
        s_mul_i32 s3, s{SW}, 80
        v_add_u32 v1, s3, v1
        v_mul_lo_u32 v1, v1, s44
        v_lshrrev_b32 v7, 4, v{L}
        v_lshl_add_u32 v1, v7, 6, v1
        s_lshl_b32 s3, s44, 4""")
        for i in range(5):
            a(f"""buffer_load_dword v{102+2*i}, v1, s[{SB0}:{SB0+3}], s6 offen
            buffer_load_dword v{103+2*i}, v1, s[{SB1}:{SB1+3}], s7 offen
            v_add_u32 v1, s3, v1""")
    for i in range(96):
        a(f"v_mov_b32 v{ACC+i}, 0")

    def dma(slot, uid):
        for i in range(2):
            a(f"""s_add_u32 m0, s{SMW}, {slot*STGB + i*8192}
            s_nop 0
            buffer_load_dwordx4 v{OA}, s[{SWS}:{SWS+3}], s{SSA+i} offen lds""")
        a(f"""s_add_u32 m0, s{SMW}, {slot*STGB + 16384}
        s_nop 0
        buffer_load_dwordx4 v{OB}, s[52:55], s{SSB} offen lds
        s_cmp_ge_u32 s{SW}, 4
        s_cbranch_scc1 g1_skip{uid}
        s_add_u32 m0, s{SMW}, {slot*STGB + 16384 + 8192}
        s_nop 0
        buffer_load_dwordx4 v{OB}, s[{SB1}:{SB1+3}], s{SSB+1} offen lds""")
        a.label(f"g1_skip{uid}")
        a(f"""s_add_u32 s{SSA}, s{SSA}, 64
        s_add_u32 s{SSA+1}, s{SSA+1}, 64
        s_add_u32 s{SSB}, s{SSB}, s{SBINC}
        s_add_u32 s{SSB+1}, s{SSB+1}, s{SBINC}""")

    def reads(slot, fs):
        if "--g1noread" in sys.argv:
            return
        for rt in range(4):
            r = AF + fs * 16 + rt * 4
            va = VA if slot < 2 else 23
            a(f"ds_read_b128 v[{r}:{r+3}], v{va} offset:{(slot&1)*STGB + rt*1024}")

    def readsB(slot, fs, wn):
        if "--g1noread" in sys.argv:
            return
        for ct in range(6):
            col16 = 3 * wn + (ct % 3)
            sub = (ct // 3) * 3 + (col16 >> 1)
            h2 = col16 & 1
            for half in range(2):
                r = BF + fs * 24 + ct * 4 + half * 2
                vb = VBH[h2] if slot < 2 else 29 + h2
                a(f"ds_read_b64_tr_b16 v[{r}:{r+1}], v{vb} offset:{(slot&1)*STGB + sub*2048 + half*256}")

    def mfmas(fs, swapped):
        if "--g1nomfma" in sys.argv:
            return
        for rt in range(4):
            for ct in range(6):
                d = ACC + 4 * (rt * 6 + ct)
                af = AF + fs * 16 + rt * 4
                bf = BF + fs * 24 + ct * 4
                x, y = (bf, af) if swapped else (af, bf)
                a(f"v_mfma_f32_16x16x32_bf16 v[{d}:{d+3}], v[{x}:{x+3}], v[{y}:{y+3}], v[{d}:{d+3}]")

    def loop(tag, swapped, wn):
        U = 20
        npw = 3
        issued = NSTG - 1
        for st in range(NSTG - 1):
            dma(st, f"{tag}p{st}")
        a(f"""s_waitcnt vmcnt({(issued-1)*npw})
        s_barrier""")
        reads(0, 0)
        readsB(0, 0, wn)
        for u in range(U):
            fs = u & 1
            if u + 1 < U:
                a(f"""s_waitcnt vmcnt({(issued-1-(u+1))*npw})
                s_barrier""")
                if issued < U:
                    dma(issued % NSTG, f"{tag}u{u}")
                    issued += 1
                reads((u + 1) % NSTG, fs ^ 1)
                readsB((u + 1) % NSTG, fs ^ 1, wn)
                a("s_waitcnt lgkmcnt(15)")
                a("s_waitcnt lgkmcnt(15)")
            else:
                a("s_waitcnt lgkmcnt(0)")
            mfmas(fs, swapped)
        a("""s_nop 15
        s_nop 3""")

    def loop2(tag, swapped, wn):
        U = 20
        npw = 3
        issued = NSTG - 1
        for st in range(NSTG - 1):
            dma(st, f"{tag}p{st}")
        a(f"""s_waitcnt vmcnt({(issued-1)*npw})
        s_barrier""")
        reads(0, 0)
        readsB(0, 0, wn)
        for u in range(U):
            fs = u & 1
            a("s_waitcnt lgkmcnt(0)")
            if u + 1 < U:
                a(f"""s_waitcnt vmcnt({(issued-1-(u+1))*npw})""")
                if "--g1nobar" not in sys.argv:
                    a("s_barrier")
                if issued < U:
                    dma(issued % NSTG, f"{tag}u{u}")
                    issued += 1
                reads((u + 1) % NSTG, fs ^ 1)
                readsB((u + 1) % NSTG, fs ^ 1, wn)
            mfmas(fs, swapped)
        a("""s_nop 15
        s_nop 3""")

    stamp(a, 1)
    a("""s_cmp_eq_u32 s{0}, 1
    s_cbranch_scc1 g1_wn1""".format(SWN))
    loop2("g1a", True, 0)
    a("s_branch g1_epi")
    a.label("g1_wn1")
    loop2("g1b", True, 1)
    a.label("g1_epi")
    stamp(a, 2)
    a("""s_cmp_eq_u32 s45, 2
    s_cbranch_scc1 g1_epi_ffn""")

    a(f"""s_mul_i32 s3, s4, 192
    s_mul_i32 s6, s{SWN}, 48
    s_add_u32 s3, s3, s6
    v_lshrrev_b32 v1, 4, v{L}
    v_lshlrev_b32 v1, 2, v1
    v_add_u32 v1, s3, v1
    v_and_b32 v2, 15, v{L}
    s_lshl_b32 s6, s{SWM}, 6
    s_add_u32 s6, s6, s{SM0}
    v_add_u32 v2, s6, v2
    s_movk_i32 s7, 3277
    s_movk_i32 s48, 20
    s_mov_b32 s60, {WS_Q}
    s_mov_b32 s61, {WS_VT}
    s_mov_b32 s47, {hex(f2u(QSCALE))}""")
    for ct in range(6):
        coff = (ct // 3) * 96 + (ct % 3) * 16
        a(f"""v_add_u32 v3, {coff}, v1
        v_cmp_le_u32 vcc, 640, v3
        s_nop 1
        v_cndmask_b32 v4, 0, 1, vcc
        v_cmp_le_u32 vcc, 1280, v3
        s_nop 1
        v_cndmask_b32 v5, 0, 1, vcc
        v_add_u32 v4, v4, v5
        s_movk_i32 s3, 640
        v_mul_lo_u32 v6, v4, s3
        v_sub_u32 v3, v3, v6
        v_mul_lo_u32 v6, v3, s7
        v_lshrrev_b32 v6, 16, v6
        v_mul_lo_u32 v7, v6, s48
        v_sub_u32 v7, v3, v7""")
        a(f"""v_lshlrev_b32 v8, 22, v4
        v_lshl_add_u32 v8, v6, 17, v8
        v_lshl_add_u32 v8, v7, 1, v8
        v_lshl_add_u32 v9, v6, 5, v7
        v_lshlrev_b32 v9, 12, v9
        v_cmp_eq_u32 vcc, 0, v4
        v_mov_b32 v10, 1.0
        v_mov_b32 v11, s47
        v_cndmask_b32 v10, v10, v11, vcc
        v_cmp_eq_u32 s[56:57], 0, v5
        s_nop 3""")
        for rt in range(4):
            d = ACC + 4 * (rt * 6 + ct)
            a(f"""v_mul_f32 v12, v10, v{d}
            v_mul_f32 v13, v10, v{d+1}
            v_mul_f32 v14, v10, v{d+2}
            v_mul_f32 v15, v10, v{d+3}
            v_cvt_pk_bf16_f32 v24, v12, v13
            v_cvt_pk_bf16_f32 v25, v14, v15
            v_add_u32 v26, {16*rt}, v2
            v_lshl_add_u32 v27, v26, 6, v8
            s_mov_b64 s[58:59], exec
            s_and_b64 exec, exec, s[56:57]
            buffer_store_dwordx2 v[24:25], v27, s[{SWS}:{SWS+3}], s60 offen
            s_andn2_b64 exec, s[58:59], s[56:57]
            v_and_b32 v27, 0xfffffff3, v26
            v_bfe_u32 v28, v26, 2, 1
            v_lshl_or_b32 v27, v28, 3, v27
            v_bfe_u32 v28, v26, 3, 1
            v_lshl_or_b32 v27, v28, 2, v27
            v_lshl_add_u32 v27, v27, 1, v9
            buffer_store_short v24, v27, s[{SWS}:{SWS+3}], s61 offen
            v_add_u32 v28, 4096, v27
            buffer_store_short_d16_hi v24, v28, s[{SWS}:{SWS+3}], s61 offen
            v_add_u32 v27, 8192, v27
            buffer_store_short v25, v27, s[{SWS}:{SWS+3}], s61 offen
            v_add_u32 v28, 8192, v28
            buffer_store_short_d16_hi v25, v28, s[{SWS}:{SWS+3}], s61 offen
            s_mov_b64 exec, s[58:59]""")
    a("s_branch g1_end2")

    a.label("g1_epi_ffn")
    a(f"""v_and_b32 v2, 15, v{L}
    s_lshl_b32 s6, s{SWM}, 6
    s_add_u32 s6, s6, s{SM0}
    v_add_u32 v2, s6, v2
    s_movk_i32 s7, 3456
    v_mul_lo_u32 v2, v2, s7
    v_lshrrev_b32 v1, 4, v{L}
    v_lshlrev_b32 v1, 3, v1
    v_add_u32 v2, v2, v1
    s_mul_i32 s3, s4, 192
    s_mul_i32 s6, s{SWN}, 96
    s_add_u32 s3, s3, s6
    s_add_u32 s3, s3, {WS_H}
    s_mov_b32 s46, {hex(f2u(0.044715))}
    s_mov_b32 s47, {hex(f2u(-2.0*0.7978845608028654*1.4426950408889634))}""")
    for rt in range(4):
        for ct in range(3):
            for e in range(4):
                gi = ACC + 4 * (rt * 6 + ct) + e
                ui = ACC + 4 * (rt * 6 + ct + 3) + e
                bf16r(a, 3, gi)
                a(f"""v_mul_f32 v4, v3, v3
                v_mul_f32 v4, s46, v4
                v_fma_f32 v4, v4, v3, v3
                v_mul_f32 v4, s47, v4
                v_exp_f32 v4, v4
                s_nop 0
                v_add_f32 v4, 1.0, v4
                v_rcp_f32 v4, v4
                s_nop 0
                v_mul_f32 v4, v4, v3""")
                bf16r(a, 4, 4)
                bf16r(a, 5, ui)
                a(f"v_mul_f32 v{6+e}, v4, v5")
            r = 10 + 2 * (ct & 1)
            a(f"""v_cvt_pk_bf16_f32 v{r}, v6, v7
            v_cvt_pk_bf16_f32 v{r+1}, v8, v9
            buffer_store_dwordx2 v[{r}:{r+1}], v2, s[{SWS}:{SWS+3}], s3 offen offset:{ct*32}""")
        if rt < 3:
            a(f"v_add_u32 v2, {16*3456}, v2")
    a.label("g1_end2")
    a("s_waitcnt vmcnt(0)")
    stamp(a, 3)
    stamp_dump(a, 4, "g1")
    a.label("g1_end")
    a("s_endpgm")


def gen_attn(a):
    kernel_head(a, "attn_kernel")
    Q1, Q2 = 16, 20
    KF = (24, 32)
    VF = (40, 48)
    S = (56, 72)
    O = 88
    VKA, VVA = 104, 106
    VOK, VOV = 114, 115
    VMAX, VT, VM, VTMP, VTM2, VXA, VLT32 = 116, 117, 118, 119, 120, 121, 122
    a("""s_cmp_ge_u32 s2, 256
    s_cbranch_scc1 at_gemm
    s_load_dwordx2 s[6:7], s[0:1], 72
    v_and_b32 v2, 63, v0
    v_lshrrev_b32 v1, 6, v0
    s_nop 0
    v_readfirstlane_b32 s20, v1
    s_and_b32 s21, s2, 7
    s_lshr_b32 s22, s2, 6
    s_lshl_b32 s22, s22, 3
    s_add_u32 s21, s21, s22
    s_lshr_b32 s22, s2, 3
    s_and_b32 s22, s22, 7
    s_lshl_b32 s22, s22, 8
    s_lshl_b32 s3, s20, 5
    s_add_u32 s22, s22, s3
    s_lshl_b32 s38, s20, 10
    s_waitcnt lgkmcnt(0)""")
    srd(a, 8, 6, 7, WS_BYTES)
    stamp(a, 0)
    a(f"""v_and_b32 v1, 31, v2
    v_add_u32 v1, s22, v1
    v_lshlrev_b32 v1, 6, v1
    v_lshrrev_b32 v3, 5, v2
    v_lshl_add_u32 v1, v3, 4, v1
    s_lshl_b32 s3, s21, 17
    s_add_u32 s3, s3, {WS_Q}
    buffer_load_dwordx4 v[{Q1}:{Q1+3}], v1, s[8:11], s3 offen
    buffer_load_dwordx4 v[{Q2}:{Q2+3}], v1, s[8:11], s3 offen offset:32""")
    a(f"""v_lshrrev_b32 v1, 2, v2
    v_lshlrev_b32 v1, 6, v1
    v_and_b32 v3, 3, v2
    v_bfe_u32 v4, v2, 4, 2
    v_xor_b32 v3, v3, v4
    v_lshl_add_u32 v{VOK}, v3, 4, v1
    v_lshrrev_b32 v1, 4, v2
    v_and_b32 v3, 15, v2
    v_xor_b32 v3, v3, v1
    s_lshl_b32 s3, s20, 2
    s_and_b32 s3, s3, 12
    v_xor_b32 v3, s3, v3
    v_lshlrev_b32 v1, 12, v1
    v_lshl_add_u32 v{VOV}, v3, 4, v1""")
    a(f"""s_lshl_b32 s3, s21, 11
    s_lshl_b32 s4, s20, 4
    s_add_u32 s3, s3, s4
    s_lshl_b32 s3, s3, 6
    s_add_u32 s28, s3, {WS_K}
    s_lshl_b32 s3, s21, 5
    s_lshl_b32 s4, s20, 2
    s_add_u32 s3, s3, s4
    s_lshl_b32 s3, s3, 12
    s_add_u32 s30, s3, {WS_VT}""")
    for mf in range(2):
        a(f"""v_and_b32 v1, 31, v2
        v_lshrrev_b32 v3, 5, v2
        v_add_u32 v3, {2*mf}, v3
        v_bfe_u32 v4, v2, 2, 2
        v_xor_b32 v3, v3, v4
        v_lshlrev_b32 v1, 6, v1
        v_lshl_add_u32 v{VKA+mf}, v3, 4, v1""")
    for tt in range(4):
        for mf in range(2):
            a(f"""v_and_b32 v1, 31, v2
            v_lshrrev_b32 v3, 5, v2
            v_add_u32 v3, {tt*4+2*mf}, v3
            v_and_b32 v4, 15, v2
            v_xor_b32 v3, v3, v4
            v_lshlrev_b32 v1, 8, v1
            v_lshl_add_u32 v1, v3, 4, v1
            v_add_u32 v{VVA+tt*2+mf}, 8192, v1""")
    a(f"""v_xor_b32 v{VXA}, 32, v2
    v_lshlrev_b32 v{VXA}, 2, v{VXA}
    v_mov_b32 v{VT}, 0xff800000
    v_mov_b32 v{VM}, 0
    v_cmp_gt_u32 vcc, 32, v2
    s_nop 1
    v_cndmask_b32 v{VLT32}, 0, -1, vcc""")
    for i in range(16):
        a(f"v_mov_b32 v{O+i}, 0")

    def dma(slot):
        a(f"""s_add_u32 m0, s38, {slot*16384}
        s_nop 0
        buffer_load_dwordx4 v{VOK}, s[8:11], s28 offen lds
        s_add_u32 m0, s38, {slot*16384 + 8192}
        s_nop 0
        buffer_load_dwordx4 v{VOV}, s[8:11], s30 offen lds
        s_add_u32 s28, s28, 8192
        s_add_u32 s30, s30, 256""")

    def readK(ti):
        slot, tt = (ti >> 2) & 3, ti & 3
        r = KF[ti & 1]
        for mf in range(2):
            a(f"ds_read_b128 v[{r+4*mf}:{r+4*mf+3}], v{VKA+mf} offset:{slot*16384 + tt*2048}")

    def readV(ti):
        slot, tt = (ti >> 2) & 3, ti & 3
        r = VF[ti & 1]
        for mf in range(2):
            a(f"ds_read_b128 v[{r+4*mf}:{r+4*mf+3}], v{VVA+tt*2+mf} offset:{slot*16384}")

    def qk(ti):
        s_, k_ = S[ti & 1], KF[ti & 1]
        a(f"""v_mfma_f32_32x32x16_bf16 v[{s_}:{s_+15}], v[{k_}:{k_+3}], v[{Q1}:{Q1+3}], 0
        v_mfma_f32_32x32x16_bf16 v[{s_}:{s_+15}], v[{k_+4}:{k_+7}], v[{Q2}:{Q2+3}], v[{s_}:{s_+15}]""")

    for c in range(3):
        dma(c)
    a(f"""s_waitcnt vmcnt(6)
    v_and_b32 v{Q2}, v{Q2}, v{VLT32}
    v_and_b32 v{Q2+1}, v{Q2+1}, v{VLT32}
    v_mov_b32 v{Q2+2}, 0
    v_mov_b32 v{Q2+3}, 0
    s_waitcnt vmcnt(4)
    s_barrier""")
    readK(0)
    readK(1)
    readV(0)
    a("s_waitcnt lgkmcnt(4)")
    qk(0)
    a("s_mov_b32 s37, 3")
    stamp(a, 1)
    resc = []

    def body(tagp, last):
        for ti in range(16):
            tag = f"{tagp}_{ti}"
            c_local = ti >> 2
            if (ti & 3) == 2:
                if last:
                    if c_local < 3:
                        a(f"s_waitcnt vmcnt({(2, 2, 0)[c_local]})")
                        a("s_barrier")
                        if c_local == 0:
                            dma(3)
                else:
                    a("""s_waitcnt vmcnt(2)
                    s_barrier""")
                    dma((c_local + 3) & 3)
            fin = last and ti == 15
            s_ = S[ti & 1]
            if not fin:
                a("s_waitcnt lgkmcnt(2)")
                qk(ti + 1)
                readK(ti + 2)
                readV(ti + 1)
            a(f"""v_max3_f32 v{VMAX}, v{s_}, v{s_+1}, v{s_+2}
            v_max3_f32 v{VTMP}, v{s_+3}, v{s_+4}, v{s_+5}
            v_max3_f32 v{VMAX}, v{VMAX}, v{s_+6}, v{s_+7}
            v_max3_f32 v{VTMP}, v{VTMP}, v{s_+8}, v{s_+9}
            v_max3_f32 v{VMAX}, v{VMAX}, v{s_+10}, v{s_+11}
            v_max3_f32 v{VTMP}, v{VTMP}, v{s_+12}, v{s_+13}
            v_max3_f32 v{VMAX}, v{VMAX}, v{s_+14}, v{s_+15}
            v_max_f32 v{VMAX}, v{VMAX}, v{VTMP}
            v_cmp_gt_f32 vcc, v{VMAX}, v{VT}
            s_cbranch_vccnz at_resc{tag}""")
            a.label(f"at_back{tag}")
            for i in range(16):
                a(f"v_exp_f32 v{s_+i}, v{s_+i}")
            a("s_nop 0")
            P = s_
            for i in range(8):
                a(f"v_cvt_pk_bf16_f32 v{P+i}, v{s_+2*i}, v{s_+2*i+1}")
            v_ = VF[ti & 1]
            a(f"""s_waitcnt lgkmcnt({0 if fin else 4})
            s_nop 0
            v_mfma_f32_32x32x16_bf16 v[{O}:{O+15}], v[{v_}:{v_+3}], v[{P}:{P+3}], v[{O}:{O+15}]
            v_mfma_f32_32x32x16_bf16 v[{O}:{O+15}], v[{v_+4}:{v_+7}], v[{P+4}:{P+7}], v[{O}:{O+15}]""")
            resc.append((tag, ti, fin))

    a.label("at_loop")
    body("l", False)
    a("""s_sub_u32 s37, s37, 1
    s_cmp_lg_u32 s37, 0
    s_cbranch_scc1 at_loop""")
    body("f", True)
    stamp(a, 2)
    a(f"""s_nop 15
    s_nop 3
    v_or_b32 v1, 32, v2
    v_lshlrev_b32 v1, 2, v1
    ds_bpermute_b32 v{VTMP}, v1, v{O+8}
    s_waitcnt lgkmcnt(0)
    v_rcp_f32 v{VTM2}, v{VTMP}
    s_nop 0
    v_fma_f32 v3, -v{VTMP}, v{VTM2}, 1.0
    v_fma_f32 v{VTM2}, v3, v{VTM2}, v{VTM2}
    v_and_b32 v1, 31, v2
    v_add_u32 v1, s22, v1
    s_movk_i32 s3, 1280
    v_mul_lo_u32 v1, v1, s3
    v_lshrrev_b32 v3, 5, v2
    v_lshl_add_u32 v1, v3, 3, v1
    s_mul_i32 s3, s21, 40
    s_add_u32 s3, s3, {WS_O}""")
    for g in range(3):
        for e in range(4):
            a(f"v_mul_f32 v{4+e}, v{O+4*g+e}, v{VTM2}")
        a("""v_cvt_pk_bf16_f32 v8, v4, v5
        v_cvt_pk_bf16_f32 v9, v6, v7""")
        if g == 2:
            a("""v_cmp_gt_u32 vcc, 32, v2
            s_and_saveexec_b64 s[24:25], vcc""")
        a(f"buffer_store_dwordx2 v[8:9], v1, s[8:11], s3 offen offset:{16*g}")
        if g == 2:
            a("s_mov_b64 exec, s[24:25]")
        a("s_nop 1")
    stamp(a, 3)
    stamp_dump(a, 4, "at")
    a("s_branch at_end")
    for tag, ti, fin in resc:
        s_ = S[ti & 1]
        s2 = S[(ti + 1) & 1]
        a.label(f"at_resc{tag}")
        a(f"""ds_bpermute_b32 v{VTMP}, v{VXA}, v{VMAX}
        s_waitcnt lgkmcnt(0)
        v_max_f32 v{VMAX}, v{VMAX}, v{VTMP}
        v_cmp_gt_f32 vcc, v{VMAX}, v{VT}
        s_nop 1
        v_cndmask_b32 v{VMAX}, 0, v{VMAX}, vcc
        v_add_f32 v{VTMP}, v{VM}, v{VMAX}""")
        bf16r(a, VTMP, VTMP)
        a(f"""v_sub_f32 v{VMAX}, v{VTMP}, v{VM}
        v_mov_b32 v{VM}, v{VTMP}
        v_max_f32 v{VTM2}, 0, v{VMAX}
        v_sub_f32 v{VTM2}, 0, v{VTM2}
        v_exp_f32 v{VTM2}, v{VTM2}
        v_lshrrev_b32 v{VTMP}, 16, v{VTMP}
        v_xor_b32 v{VTMP}, 0x8000, v{VTMP}
        s_nop 15
        s_nop 15
        v_and_b32 v{Q2+2}, v{VTMP}, v{VLT32}
        v_mov_b32 v{VT}, 0x41000000""")
        for i in range(16):
            a(f"v_mul_f32 v{O+i}, v{O+i}, v{VTM2}")
        for i in range(16):
            a(f"v_sub_f32 v{s_+i}, v{s_+i}, v{VMAX}")
        if not fin:
            for i in range(16):
                a(f"v_sub_f32 v{s2+i}, v{s2+i}, v{VMAX}")
        a(f"s_branch at_back{tag}")
    a.label("at_end")
    a("s_endpgm")
    a.label("at_gemm")
    a("""s_sub_u32 s2, s2, 256
    v_cmp_le_u32 vcc, 256, v0
    s_cbranch_vccnz at_end""")
    gemm_small(a, "dp", "down")


def gemm_small(a, tag, kind):
    nsub = 1
    down = kind == "down"
    a(f"""s_cmp_ge_u32 s2, 160
    s_cbranch_scc1 {tag}_end
    s_load_dwordx2 s[4:5], s[0:1], {48 if down else 16}
    s_load_dwordx2 s[6:7], s[0:1], 72
    s_load_dwordx2 s[26:27], s[0:1], 0
    s_load_dwordx2 s[50:51], s[0:1], 56""")
    gemm_setup(a, nsub)
    a("s_waitcnt lgkmcnt(0)")
    srd(a, S_WS, 6, 7, WS_BYTES)
    srd(a, S_ASRD, 6, 7, WS_BYTES)
    srd(a, S_B0, 4, 5, (1728 if down else 640) * 640 * 2)
    srd(a, 52, 26, 27, 2621440)
    srd(a, 56, 50, 51, 2621440)
    a(f"""s_lshr_b32 s3, s2, 3
    s_and_b32 s5, s2, 7
    s_lshl_b32 s5, s5, 1
    s_cmp_ge_u32 s3, 10
    s_cselect_b32 s4, 1, 0
    s_add_u32 s5, s5, s4
    s_mul_i32 s4, s4, 10
    s_sub_u32 s4, s3, s4
    s_lshl_b32 s{S_M0}, s5, 7
    s_movk_i32 s44, 1280""")
    lda = 3456 if down else 1280
    gemm_voffA(a, V_OA, lda)
    gemm_voffB(a, V_OB, 44)
    L = V_LANE
    a(f"""v_and_b32 v2, 31, v{L}
    s_lshl_b32 s6, s{S_WM}, 6
    s_add_u32 s6, s6, s{S_M0}
    v_add_u32 v2, s6, v2
    s_movk_i32 s7, 1280
    v_mul_lo_u32 v2, v2, s7
    v_lshrrev_b32 v1, 5, v{L}
    v_lshlrev_b32 v1, 3, v1
    v_add_u32 v25, v2, v1
    v_add_u32 v26, {32*1280}, v25
    s_lshl_b32 s3, s4, 7
    s_lshl_b32 s6, s{S_WN}, 6
    s_add_u32 s49, s3, s6
    s_add_u32 s48, s49, {WS_BR}
    s_lshl_b32 s6, s4, 7""")
    gemm_offsets(a, nsub, lda, WS_H if down else WS_O, 44, (6,))
    zero_acc(a, 32)
    gemm_loop(a, tag, nsub, True, 27 if down else 10, S_ASRD, V_OA)
    if down:
        for t in range(2):
            for g in range(4):
                acc = V_ACC + 16 * t + 4 * g
                r = 12 + 2 * (g & 1)
                a(f"""v_cvt_pk_bf16_f32 v{r}, v{acc}, v{acc+1}
                v_cvt_pk_bf16_f32 v{r+1}, v{acc+2}, v{acc+3}
                buffer_store_dwordx2 v[{r}:{r+1}], v{25+t}, s[{S_WS}:{S_WS+3}], s48 offen offset:{g*16}""")
    else:
        for t in range(2):
            for g in range(4):
                a(f"""buffer_load_dwordx2 v[{32+2*g}:{33+2*g}], v{25+t}, s[52:55], s49 offen offset:{g*16}
                buffer_load_dwordx2 v[{40+2*g}:{41+2*g}], v{25+t}, s[{S_WS}:{S_WS+3}], s48 offen offset:{g*16}""")
            a("s_waitcnt vmcnt(0)")
            for g in range(4):
                for e in range(4):
                    acc = V_ACC + 16 * t + 4 * g + e
                    xr = 32 + 2 * g + (e >> 1)
                    br = 40 + 2 * g + (e >> 1)
                    bf16r(a, 10, acc)
                    if e & 1:
                        a(f"""v_and_b32 v11, 0xffff0000, v{xr}
                        v_and_b32 v3, 0xffff0000, v{br}""")
                    else:
                        a(f"""v_lshlrev_b32 v11, 16, v{xr}
                        v_lshlrev_b32 v3, 16, v{br}""")
                    a("v_add_f32 v10, v10, v11")
                    bf16r(a, 10, 10)
                    a(f"v_add_f32 v{4+e}, v10, v3")
                r = 12 + 2 * (g & 1)
                a(f"""v_cvt_pk_bf16_f32 v{r}, v4, v5
                v_cvt_pk_bf16_f32 v{r+1}, v6, v7
                buffer_store_dwordx2 v[{r}:{r+1}], v{25+t}, s[56:59], s49 offen offset:{g*16}""")
    a.label(f"{tag}_end")
    a("s_endpgm")


def gen_gemm2(a):
    kernel_head(a, "gemm2_kernel")
    gemm_small(a, "g2", "final")


def kd(name, vgpr, sgpr=102):
    acc = (vgpr + 3) // 4 * 4
    return f""".amdhsa_kernel {name}
  .amdhsa_next_free_vgpr {vgpr}
  .amdhsa_next_free_sgpr {sgpr}
  .amdhsa_accum_offset {acc}
  .amdhsa_group_segment_fixed_size 0
  .amdhsa_kernarg_size 80
  .amdhsa_user_sgpr_count 2
  .amdhsa_user_sgpr_kernarg_segment_ptr 1
  .amdhsa_system_sgpr_workgroup_id_x 1
.end_amdhsa_kernel"""


def main():
    hdr = open(f"cdna_kernels/{NAME}.s.ref").read().split("\n")
    head = [l for l in hdr if l.startswith(";") and "@launch" not in l]
    a = Asm()
    for l in head:
        a.raw(l)
    a.raw("; @launch kernel=ln_kernel grid=(512,1,1) block=(256,1,1) lds=0")
    a.raw(f"; @launch kernel=gemm1_kernel grid=(256,1,1) block=(512,1,1) lds={G1_NST*G1_STG}")
    a.raw("; @launch kernel=attn_kernel grid=(416,1,1) block=(512,1,1) lds=65536")
    a.raw(f"; @launch kernel=gemm2_kernel grid=(160,1,1) block=(256,1,1) lds={NST*STG}")
    a.raw('.amdgcn_target "amdgcn-amd-amdhsa--gfx950"')
    a.raw(".text")
    gen_ln(a)
    gen_gemm1(a)
    gen_attn(a)
    gen_gemm2(a)
    a.raw('.section .rodata,"a"')
    for name, v in (("ln_kernel", 48), ("gemm1_kernel", 240), ("attn_kernel", 128), ("gemm2_kernel", 128)):
        a.raw(".p2align 6")
        a.raw(kd(name, v))
    open(f"cdna_kernels/{NAME}.s", "w").write("\n".join(a.L) + "\n")


if __name__ == "__main__":
    main()
```

```python
import sys

NAME = "parallel_sum__mha_block__glu_gated_geglu__prompt"

WS_XN = 0x0
WS_Q = 0x300000
WS_K = 0x700000
WS_VT = 0xB00000
WS_H = 0xF00000
WS_O = 0x1700000
WS_BR = 0x1A00000
WS_BYTES = 0x10000000

QSCALE = 0.32260095


def f2u(x):
    import struct
    return struct.unpack("<I", struct.pack("<f", x))[0]


class Asm:
    def __init__(self):
        self.L = []

    def __call__(self, s):
        for line in s.strip().split("\n"):
            line = line.strip()
            if line:
                if line.startswith("buffer_") and "offset:" in line:
                    off = int(line.split("offset:")[1].split()[0])
                    assert 0 <= off < 4096, line
                self.L.append("    " + line)

    def label(self, s):
        self.L.append(s + ":")

    def raw(self, s):
        self.L.append(s)


def srd(a, d, lo, hi, nbytes):
    a(f"""s_mov_b32 s{d}, s{lo}
    s_and_b32 s{d+1}, s{hi}, 0xffff
    s_mov_b32 s{d+2}, {nbytes}
    s_mov_b32 s{d+3}, 0x00020000""")


def kernel_head(a, name):
    a.raw(f".globl {name}")
    a.raw(".p2align 8")
    a.raw(f".type {name},@function")
    a.label(name)


def bf16r(a, dst, src):
    a(f"""v_cvt_pk_bf16_f32 v{dst}, v{src}, v{src}
    v_lshlrev_b32 v{dst}, 16, v{dst}""")


def butterfly_sum(a, v, tmp, addr, lane):
    for m in (1, 2, 4, 8, 16, 32):
        a(f"""v_xor_b32 v{addr}, {m}, v{lane}
        v_lshlrev_b32 v{addr}, 2, v{addr}
        ds_bpermute_b32 v{tmp}, v{addr}, v{v}
        s_waitcnt lgkmcnt(0)
        v_add_f32 v{v}, v{v}, v{tmp}""")


def gen_ln(a):
    kernel_head(a, "ln_kernel")
    a("""s_cmp_ge_u32 s2, 512
    s_cbranch_scc1 ln_end
    s_load_dwordx2 s[4:5], s[0:1], 0
    s_load_dwordx2 s[6:7], s[0:1], 72
    v_lshrrev_b32 v1, 6, v0
    v_and_b32 v2, 63, v0
    s_nop 0
    v_readfirstlane_b32 s8, v1
    s_lshl_b32 s9, s2, 2
    s_add_u32 s9, s9, s8
    s_mul_i32 s10, s9, 1280
    s_waitcnt lgkmcnt(0)""")
    srd(a, 12, 4, 5, 2621440)
    srd(a, 16, 6, 7, WS_BYTES)
    a("v_lshlrev_b32 v3, 2, v2")
    for i in range(5):
        a(f"buffer_load_dword v{10+i}, v3, s[12:15], s10 offen offset:{256*i}")
    a("s_waitcnt vmcnt(0)")
    for i in range(5):
        a(f"""v_lshlrev_b32 v{20+2*i}, 16, v{10+i}
        v_and_b32 v{21+2*i}, 0xffff0000, v{10+i}""")
    a("v_add_f32 v30, v20, v21")
    for i in range(2, 10):
        a(f"v_add_f32 v30, v30, v{20+i}")
    butterfly_sum(a, 30, 40, 41, 2)
    a(f"v_mul_f32 v31, {hex(f2u(1.0/640))}, v30")
    a("v_mov_b32 v32, 0")
    for i in range(10):
        a(f"""v_sub_f32 v33, v{20+i}, v31
        v_fmac_f32 v32, v33, v33""")
    butterfly_sum(a, 32, 40, 41, 2)
    a(f"v_mul_f32 v32, {hex(f2u(1.0/640))}, v32")
    bf16r(a, 34, 31)
    bf16r(a, 35, 32)
    a(f"v_add_f32 v35, {hex(f2u(1e-5))}, v35")
    bf16r(a, 35, 35)
    a("v_sqrt_f32 v35, v35")
    a("s_nop 0")
    bf16r(a, 35, 35)
    a("v_rcp_f32 v36, v35")
    a("s_nop 0")
    for i in range(10):
        a(f"v_sub_f32 v{20+i}, v{20+i}, v34")
        bf16r(a, 20 + i, 20 + i)
        a(f"""v_mul_f32 v37, v{20+i}, v36
        v_fma_f32 v38, -v37, v35, v{20+i}
        v_fma_f32 v{20+i}, v38, v36, v37""")
    for i in range(5):
        a(f"v_cvt_pk_bf16_f32 v{10+i}, v{20+2*i}, v{21+2*i}")
    for i in range(5):
        a(f"buffer_store_dword v{10+i}, v3, s[16:19], s10 offen offset:{256*i}")
    a(f"""v_lshlrev_b32 v4, 17, v2
    s_lshl_b32 s11, s9, 6
    s_add_u32 s11, s11, {WS_K + 40}
    v_mov_b32 v6, 0x3f80
    v_mov_b32 v7, 0
    v_mov_b32 v8, 0
    v_mov_b32 v9, 0
    v_cmp_gt_u32 vcc, 32, v2
    s_and_saveexec_b64 s[20:21], vcc
    buffer_store_dwordx2 v[6:7], v4, s[16:19], s11 offen
    buffer_store_dwordx2 v[8:9], v4, s[16:19], s11 offen offset:8
    buffer_store_dwordx2 v[8:9], v4, s[16:19], s11 offen offset:16
    s_mov_b64 exec, s[20:21]""")
    a(f"""s_lshr_b32 s22, s9, 6
    s_and_b32 s23, s9, 63
    s_mul_i32 s23, s23, 48
    s_lshl_b32 s22, s22, 17
    s_add_u32 s22, s22, {WS_VT + 20*4096}
    v_add_u32 v4, s23, v2
    v_mov_b32 v5, 0x3f803f80
    v_cmp_gt_u32 vcc, 256, v4
    s_nop 1
    v_cndmask_b32 v6, 0, v5, vcc
    v_mov_b32 v7, v6
    v_mov_b32 v8, v6
    v_mov_b32 v9, v6
    v_lshlrev_b32 v4, 4, v4
    v_cmp_gt_u32 vcc, 48, v2
    s_and_saveexec_b64 s[20:21], vcc
    buffer_store_dwordx4 v[6:9], v4, s[16:19], s22 offen
    s_mov_b64 exec, s[20:21]""")
    a.label("ln_end")
    a("s_endpgm")


NST = 5 if '--nst5' in sys.argv else 4
STG = 16384
V_ACC = 64
V_AF = 32
V_BF = 48
V_VA = 16
V_VB = 20
V_OA = 21
V_OB = 22
V_LANE = 23
S_WS = 8
S_B0 = 12
S_B1 = 16
S_W = 20
S_WM = 21
S_WN = 22
S_M0 = 23
S_SA = 28
S_SB = 32
S_SBINC = 36
S_CNT = 37
S_MW = 38
S_ASRD = 40


def gemm_setup(a, nsub):
    a(f"""v_and_b32 v{V_LANE}, 63, v0
    v_lshrrev_b32 v1, 6, v0
    s_nop 0
    v_readfirstlane_b32 s{S_W}, v1
    s_lshr_b32 s{S_WM}, s{S_W}, 1
    s_and_b32 s{S_WN}, s{S_W}, 1
    s_lshl_b32 s{S_MW}, s{S_W}, 10""")
    L = V_LANE
    a(f"""v_and_b32 v1, 31, v{L}
    s_lshl_b32 s3, s{S_WM}, 6
    v_add_u32 v1, s3, v1
    v_lshlrev_b32 v1, 6, v1
    v_lshrrev_b32 v2, 5, v{L}
    v_bfe_u32 v3, v{L}, 2, 2""")
    for kk in range(2):
        a(f"""v_add_u32 v4, {2*kk}, v2
        v_xor_b32 v4, v4, v3
        v_lshl_add_u32 v{V_VA+kk}, v4, 4, v1""")
    a(f"""v_lshrrev_b32 v1, 5, v{L}
    v_lshlrev_b32 v1, 3, v1
    v_bfe_u32 v2, v{L}, 2, 2
    v_add_u32 v1, v1, v2
    v_lshlrev_b32 v1, 7, v1
    v_bfe_u32 v2, v{L}, 4, 1
    v_lshlrev_b32 v2, 1, v2
    v_bfe_u32 v3, v{L}, 1, 1
    v_add_u32 v2, v2, v3
    s_lshl_b32 s3, s{S_WN}, 2
    v_add_u32 v2, s3, v2
    v_bfe_u32 v3, v{L}, 3, 1
    v_lshlrev_b32 v3, 2, v3
    v_xor_b32 v2, v2, v3
    v_lshl_add_u32 v1, v2, 4, v1
    v_and_b32 v2, 1, v{L}
    v_lshl_add_u32 v1, v2, 3, v1
    v_add_u32 v{V_VB}, 8192, v1""")


def gemm_voffA(a, dst, lda):
    L = V_LANE
    a(f"""v_lshrrev_b32 v1, 2, v{L}
    s_mov_b32 s3, {lda}
    v_mul_lo_u32 v1, v1, s3
    v_bfe_u32 v2, v{L}, 4, 2
    v_and_b32 v3, 3, v{L}
    v_xor_b32 v2, v2, v3
    v_lshl_add_u32 v{dst}, v2, 4, v1""")


def gemm_voffB(a, dst, s_ldb):
    L = V_LANE
    a(f"""v_lshrrev_b32 v1, 3, v{L}
    v_mul_lo_u32 v1, v1, s{s_ldb}
    v_bfe_u32 v2, v{L}, 4, 1
    v_lshlrev_b32 v2, 2, v2
    v_and_b32 v3, 7, v{L}
    v_xor_b32 v2, v2, v3
    v_lshl_add_u32 v{dst}, v2, 4, v1""")


def gemm_offsets(a, nsub, lda, abase, s_ldb, s_cols):
    for i in range(2):
        a(f"""s_lshl_b32 s3, s{S_W}, 4
        s_add_u32 s3, s3, {64*i}
        s_add_u32 s3, s3, s{S_M0}
        s_mul_i32 s3, s3, {lda}
        s_add_u32 s{S_SA+i}, s3, {abase}""")
    for s in range(nsub):
        a(f"""s_lshl_b32 s3, s{S_W}, 3
        s_mul_i32 s3, s3, s{s_ldb}
        s_add_u32 s{S_SB+s}, s3, s{s_cols[s]}""")
    a(f"s_lshl_b32 s{S_SBINC}, s{s_ldb}, 5")


def gemm_dma(a, nsub, slot, asrd, voa):
    if "--nodma" in sys.argv:
        return
    for i in range(2):
        if "--noA" in sys.argv:
            continue
        a(f"""s_add_u32 m0, s{S_MW}, {slot*STG + i*4096}
        s_nop 0
        buffer_load_dwordx4 v{voa}, s[{asrd}:{asrd+3}], s{S_SA+i} offen lds""")
    for s in range(nsub):
        if "--noB" in sys.argv:
            continue
        bs = S_B0 if s == 0 else S_B1
        a(f"""s_add_u32 m0, s{S_MW}, {slot*STG + 8192 + s*4096}
        s_nop 0
        buffer_load_dwordx4 v{V_OB}, s[{bs}:{bs+3}], s{S_SB+s} offen lds""")
    for i in range(2):
        a(f"s_add_u32 s{S_SA+i}, s{S_SA+i}, 64")
    for i in range(nsub):
        a(f"s_add_u32 s{S_SB+i}, s{S_SB+i}, s{S_SBINC}")


def gemm_reads(a, nsub, slot, kk):
    if "--noread" in sys.argv:
        return
    for t in range(2):
        r = V_AF + kk * 8 + t * 4
        a(f"ds_read_b128 v[{r}:{r+3}], v{V_VA+kk} offset:{slot*STG + t*2048}")
    for s in range(nsub):
        for half in range(2):
            r = V_BF + kk * 8 + s * 4 + half * 2
            a(f"ds_read_b64_tr_b16 v[{r}:{r+1}], v{V_VB} offset:{slot*STG + s*4096 + kk*2048 + half*512}")


def gemm_mfmas(a, nsub, kk, swapped):
    if "--nomfma" in sys.argv:
        return
    for t in range(2):
        for s in range(nsub):
            d = V_ACC + 16 * (t * nsub + s)
            af = V_AF + kk * 8 + t * 4
            bf = V_BF + kk * 8 + s * 4
            x, y = (bf, af) if swapped else (af, bf)
            a(f"v_mfma_f32_32x32x16_bf16 v[{d}:{d+15}], v[{x}:{x+3}], v[{y}:{y+3}], v[{d}:{d+15}]")


def gemm_loop(a, tag, nsub, swapped, nsteps, asrd, voa):
    U = 2 * nsteps
    npw = 2 + nsub
    if "--noA" in sys.argv:
        npw = nsub
    if "--noB" in sys.argv:
        npw = 2
    nr = 2 + 2 * nsub
    for st in range(min(NST - 1, U)):
        gemm_dma(a, nsub, st % NST, asrd, voa)
    issued = min(NST - 1, U)
    a(f"""s_waitcnt vmcnt({(issued-1)*npw})
    s_barrier""")
    gemm_reads(a, nsub, 0, 0)
    for u in range(U):
        if u + 1 < U:
            a(f"""s_waitcnt vmcnt({(issued-1-(u+1))*npw})
            s_barrier""")
            if issued < U:
                gemm_dma(a, nsub, issued % NST, asrd, voa)
                issued += 1
        gemm_reads(a, nsub, u % NST, 1)
        a(f"s_waitcnt lgkmcnt({nr})")
        gemm_mfmas(a, nsub, 0, swapped)
        if u + 1 < U:
            gemm_reads(a, nsub, (u + 1) % NST, 0)
            a(f"s_waitcnt lgkmcnt({nr})")
        else:
            a("s_waitcnt lgkmcnt(0)")
        gemm_mfmas(a, nsub, 1, swapped)
    a("""s_nop 15
    s_nop 3""")


INSTR = "--instr" in sys.argv


def stamp(a, idx):
    if INSTR:
        a(f"""s_waitcnt lgkmcnt(0)
        s_memtime s[{64+2*idx}:{65+2*idx}]
        s_waitcnt lgkmcnt(0)""")


def stamp_dump(a, n, tag):
    if not INSTR:
        return
    a(f"""s_and_b32 s60, s2, 63
    s_cmp_lg_u32 s60, 0
    s_cbranch_scc1 {tag}_nodump
    s_load_dwordx2 s[60:61], s[0:1], 64
    s_waitcnt lgkmcnt(0)
    s_mov_b32 s84, s60
    s_and_b32 s85, s61, 0xffff
    s_mov_b32 s86, 256
    s_mov_b32 s87, 0x00020000
    s_lshr_b32 s60, s2, 6
    s_mul_i32 s60, s60, {4*n}
    v_cmp_eq_u32 vcc, 0, v0
    s_and_saveexec_b64 s[62:63], vcc
    v_mov_b32 v1, 0""")
    for i in range(n):
        a(f"""v_mov_b32 v2, s{64+2*i}
        buffer_store_dword v2, v1, s[84:87], s60 offen offset:{4*i}""")
    a("s_mov_b64 exec, s[62:63]")
    a.label(f"{tag}_nodump")


def zero_acc(a, n):
    for i in range(n):
        a(f"v_mov_b32 v{V_ACC+i}, 0")


G1_NST = 5 if '--g1nst5' in sys.argv else 4
G1_STG = 28672


def gen_gemm1(a):
    kernel_head(a, "gemm1_kernel")
    NSTG, STGB = G1_NST, G1_STG
    ACC = 128
    AF = 64
    BF = 96
    ACC = 144
    VA, VB, OA, OB, L = 16, 17, 18, 19, 20
    SWS, SB0, SB1 = 8, 12, 16
    SW, SWM, SWN, SM0 = 20, 21, 22, 23
    SSA, SSB = 28, 30
    SBINC, SMW = 36, 38
    a("""s_cmp_ge_u32 s2, 256
    s_cbranch_scc1 g1_end
    s_load_dwordx2 s[4:5], s[0:1], 8
    s_load_dwordx2 s[6:7], s[0:1], 72
    s_load_dwordx4 s[24:27], s[0:1], 32""")
    a(f"""v_and_b32 v{L}, 63, v0
    v_lshrrev_b32 v1, 6, v0
    s_nop 0
    v_readfirstlane_b32 s{SW}, v1
    s_lshr_b32 s{SWM}, s{SW}, 1
    s_and_b32 s{SWN}, s{SW}, 1
    s_lshl_b32 s{SMW}, s{SW}, 10""")
    a("""s_and_b32 s3, s2, 7
    s_lshr_b32 s46, s2, 3
    s_lshr_b32 s47, s46, 3
    s_lshl_b32 s47, s47, 3
    s_add_u32 s47, s47, s3
    s_and_b32 s46, s46, 7
    s_cmp_ge_u32 s47, 28
    s_cbranch_scc1 g1_end
    s_waitcnt lgkmcnt(0)""")
    stamp(a, 0)
    srd(a, SWS, 6, 7, WS_BYTES)
    a("""s_cmp_lt_u32 s47, 10
    s_cbranch_scc1 g1_qkv""")
    srd(a, SB0, 24, 25, 640 * 1728 * 2)
    srd(a, SB1, 26, 27, 640 * 1728 * 2)
    a("""s_sub_u32 s4, s47, 10
    s_mul_i32 s6, s4, 192
    s_mov_b32 s7, s6
    s_mov_b32 s44, 3456
    s_mov_b32 s45, 2
    s_branch g1_common""")
    a.label("g1_qkv")
    srd(a, SB0, 4, 5, 640 * 1920 * 2)
    srd(a, SB1, 4, 5, 640 * 1920 * 2)
    a("""s_mov_b32 s4, s47
    s_mul_i32 s6, s4, 384
    s_add_u32 s7, s6, 192
    s_mov_b32 s44, 3840
    s_mov_b32 s45, 0""")
    a.label("g1_common")
    a(f"s_lshl_b32 s{SM0}, s46, 8")
    a(f"""v_and_b32 v1, 15, v{L}
    s_lshl_b32 s3, s{SWM}, 6
    v_add_u32 v1, s3, v1
    v_lshlrev_b32 v1, 6, v1
    v_bfe_u32 v2, v{L}, 2, 2
    v_sub_u32 v2, 4, v2
    v_and_b32 v2, 3, v2
    v_lshrrev_b32 v3, 4, v{L}
    v_xor_b32 v2, v2, v3
    v_lshl_add_u32 v{VA}, v2, 4, v1""")
    for h2 in range(2):
        a(f"""v_lshrrev_b32 v1, 4, v{L}
        v_lshlrev_b32 v1, 3, v1
        v_bfe_u32 v2, v{L}, 2, 2
        v_add_u32 v1, v1, v2
        v_lshlrev_b32 v1, 6, v1
        v_bfe_u32 v2, v{L}, 1, 1
        v_add_u32 v2, {2*h2}, v2
        v_bfe_u32 v3, v{L}, 4, 1
        v_lshlrev_b32 v3, 1, v3
        v_xor_b32 v2, v2, v3
        v_lshl_add_u32 v1, v2, 4, v1
        v_and_b32 v2, 1, v{L}
        v_lshl_add_u32 v1, v2, 3, v1
        v_add_u32 v{21+h2}, 16384, v1""")
    VBH = (21, 22)
    a(f"""v_add_u32 v23, {2*STGB}, v{VA}
    v_add_u32 v29, {2*STGB}, v21
    v_add_u32 v30, {2*STGB}, v22
    v_add_u32 v31, {4*STGB}, v{VA}
    v_add_u32 v32, {4*STGB}, v21
    v_add_u32 v33, {4*STGB}, v22""")
    a(f"""v_lshrrev_b32 v1, 2, v{L}
    s_movk_i32 s3, 1280
    v_mul_lo_u32 v1, v1, s3
    v_bfe_u32 v2, v{L}, 4, 2
    v_sub_u32 v2, 4, v2
    v_and_b32 v2, 3, v2
    v_and_b32 v3, 3, v{L}
    v_xor_b32 v2, v2, v3
    v_lshl_add_u32 v{OA}, v2, 4, v1""")
    a(f"""v_lshrrev_b32 v1, 2, v{L}
    v_mul_lo_u32 v1, v1, s44
    v_lshrrev_b32 v2, 5, v{L}
    v_lshlrev_b32 v2, 1, v2
    v_and_b32 v3, 3, v{L}
    v_xor_b32 v2, v2, v3
    v_lshl_add_u32 v{OB}, v2, 4, v1""")
    for i in range(2):
        a(f"""s_lshl_b32 s3, s{SW}, 4
        s_add_u32 s3, s3, {128*i}
        s_add_u32 s3, s3, s{SM0}
        s_mul_i32 s{SSA+i}, s3, 1280""")
    a(f"""s_lshr_b32 s3, s{SW}, 1
    s_and_b32 s48, s{SW}, 1
    s_lshl_b32 s48, s48, 4
    s_mul_i32 s48, s48, s44
    s_cmp_ge_u32 s3, 3
    s_cselect_b32 s49, s7, s6
    s_cselect_b32 s50, 3, 0
    s_sub_u32 s50, s3, s50
    s_lshl_b32 s50, s50, 6
    s_add_u32 s49, s49, s50
    s_add_u32 s{SSB}, s49, s48
    s_add_u32 s50, s3, 1
    s_lshl_b32 s50, s50, 6
    s_add_u32 s49, s7, s50
    s_add_u32 s{SSB+1}, s49, s48
    s_lshl_b32 s{SBINC}, s44, 5""")
    a(f"""s_cmp_ge_u32 s3, 3
    s_cselect_b32 s52, s{SB1}, s{SB0}
    s_cselect_b32 s53, s{SB1+1}, s{SB0+1}
    s_mov_b32 s54, s{SB0+2}
    s_mov_b32 s55, 0x00020000""")
    if "--nopf" not in sys.argv:
        a(f"""v_and_b32 v1, 31, v{L}
        s_lshl_b32 s3, s{SW}, 5
        s_add_u32 s3, s3, s{SM0}
        v_add_u32 v1, s3, v1
        s_movk_i32 s3, 1280
        v_mul_lo_u32 v1, v1, s3
        v_lshrrev_b32 v2, 5, v{L}
        v_lshl_add_u32 v1, v2, 7, v1""")
        for i in range(5):
            a(f"buffer_load_dword v{96+i}, v1, s[{SWS}:{SWS+3}], 0 offen offset:{256*i}")
        a(f"""v_and_b32 v1, 15, v{L}
        s_mul_i32 s3, s{SW}, 80
        v_add_u32 v1, s3, v1
        v_mul_lo_u32 v1, v1, s44
        v_lshrrev_b32 v7, 4, v{L}
        v_lshl_add_u32 v1, v7, 6, v1
        s_lshl_b32 s3, s44, 4""")
        for i in range(5):
            a(f"""buffer_load_dword v{102+2*i}, v1, s[{SB0}:{SB0+3}], s6 offen
            buffer_load_dword v{103+2*i}, v1, s[{SB1}:{SB1+3}], s7 offen
            v_add_u32 v1, s3, v1""")
    for i in range(96):
        a(f"v_mov_b32 v{ACC+i}, 0")

    def dma(slot, uid):
        for i in range(2):
            a(f"""s_add_u32 m0, s{SMW}, {slot*STGB + i*8192}
            s_nop 0
            buffer_load_dwordx4 v{OA}, s[{SWS}:{SWS+3}], s{SSA+i} offen lds""")
        a(f"""s_add_u32 m0, s{SMW}, {slot*STGB + 16384}
        s_nop 0
        buffer_load_dwordx4 v{OB}, s[52:55], s{SSB} offen lds
        s_cmp_ge_u32 s{SW}, 4
        s_cbranch_scc1 g1_skip{uid}
        s_add_u32 m0, s{SMW}, {slot*STGB + 16384 + 8192}
        s_nop 0
        buffer_load_dwordx4 v{OB}, s[{SB1}:{SB1+3}], s{SSB+1} offen lds""")
        a.label(f"g1_skip{uid}")
        a(f"""s_add_u32 s{SSA}, s{SSA}, 64
        s_add_u32 s{SSA+1}, s{SSA+1}, 64
        s_add_u32 s{SSB}, s{SSB}, s{SBINC}
        s_add_u32 s{SSB+1}, s{SSB+1}, s{SBINC}""")

    def reads(slot, fs):
        if "--g1noread" in sys.argv:
            return
        for rt in range(4):
            r = AF + fs * 16 + rt * 4
            va = (VA, 23, 31)[slot >> 1]
            a(f"ds_read_b128 v[{r}:{r+3}], v{va} offset:{(slot&1)*STGB + rt*1024}")

    def readsB(slot, fs, wn):
        if "--g1noread" in sys.argv:
            return
        for ct in range(6):
            col16 = 3 * wn + (ct % 3)
            sub = (ct // 3) * 3 + (col16 >> 1)
            h2 = col16 & 1
            for half in range(2):
                r = BF + fs * 24 + ct * 4 + half * 2
                vb = (VBH[h2], 29 + h2, 32 + h2)[slot >> 1]
                a(f"ds_read_b64_tr_b16 v[{r}:{r+1}], v{vb} offset:{(slot&1)*STGB + sub*2048 + half*256}")

    def mfmas(fs, swapped):
        if "--g1nomfma" in sys.argv:
            return
        for rt in range(4):
            for ct in range(6):
                d = ACC + 4 * (rt * 6 + ct)
                af = AF + fs * 16 + rt * 4
                bf = BF + fs * 24 + ct * 4
                x, y = (bf, af) if swapped else (af, bf)
                a(f"v_mfma_f32_16x16x32_bf16 v[{d}:{d+3}], v[{x}:{x+3}], v[{y}:{y+3}], v[{d}:{d+3}]")

    def loop(tag, swapped, wn):
        U = 20
        npw = 3
        issued = NSTG - 1
        for st in range(NSTG - 1):
            dma(st, f"{tag}p{st}")
        a(f"""s_waitcnt vmcnt({(issued-1)*npw})
        s_barrier""")
        reads(0, 0)
        readsB(0, 0, wn)
        for u in range(U):
            fs = u & 1
            if u + 1 < U:
                a(f"""s_waitcnt vmcnt({(issued-1-(u+1))*npw})
                s_barrier""")
                if issued < U:
                    dma(issued % NSTG, f"{tag}u{u}")
                    issued += 1
                reads((u + 1) % NSTG, fs ^ 1)
                readsB((u + 1) % NSTG, fs ^ 1, wn)
                a("s_waitcnt lgkmcnt(15)")
                a("s_waitcnt lgkmcnt(15)")
            else:
                a("s_waitcnt lgkmcnt(0)")
            mfmas(fs, swapped)
        a("""s_nop 15
        s_nop 3""")

    def loop2(tag, swapped, wn):
        U = 20
        npw = 3
        issued = NSTG - 1
        for st in range(NSTG - 1):
            dma(st, f"{tag}p{st}")
        a(f"""s_waitcnt vmcnt({(issued-1)*npw})
        s_barrier""")
        reads(0, 0)
        readsB(0, 0, wn)
        for u in range(U):
            fs = u & 1
            a("s_waitcnt lgkmcnt(0)")
            if u + 1 < U:
                a(f"""s_waitcnt vmcnt({(issued-1-(u+1))*npw})""")
                if "--g1nobar" not in sys.argv:
                    a("s_barrier")
                if issued < U:
                    dma(issued % NSTG, f"{tag}u{u}")
                    issued += 1
                reads((u + 1) % NSTG, fs ^ 1)
                readsB((u + 1) % NSTG, fs ^ 1, wn)
            mfmas(fs, swapped)
        a("""s_nop 15
        s_nop 3""")

    stamp(a, 1)
    a("""s_cmp_eq_u32 s{0}, 1
    s_cbranch_scc1 g1_wn1""".format(SWN))
    loop2("g1a", True, 0)
    a("s_branch g1_epi")
    a.label("g1_wn1")
    loop2("g1b", True, 1)
    a.label("g1_epi")
    stamp(a, 2)
    a("""s_cmp_eq_u32 s45, 2
    s_cbranch_scc1 g1_epi_ffn""")

    a(f"""s_mul_i32 s3, s4, 192
    s_mul_i32 s6, s{SWN}, 48
    s_add_u32 s3, s3, s6
    v_lshrrev_b32 v1, 4, v{L}
    v_lshlrev_b32 v1, 2, v1
    v_add_u32 v1, s3, v1
    v_and_b32 v2, 15, v{L}
    s_lshl_b32 s6, s{SWM}, 6
    s_add_u32 s6, s6, s{SM0}
    v_add_u32 v2, s6, v2
    s_movk_i32 s7, 3277
    s_movk_i32 s48, 20
    s_mov_b32 s60, {WS_Q}
    s_mov_b32 s61, {WS_VT}
    s_mov_b32 s47, {hex(f2u(QSCALE))}""")
    for ct in range(6):
        coff = (ct // 3) * 96 + (ct % 3) * 16
        a(f"""v_add_u32 v3, {coff}, v1
        v_cmp_le_u32 vcc, 640, v3
        s_nop 1
        v_cndmask_b32 v4, 0, 1, vcc
        v_cmp_le_u32 vcc, 1280, v3
        s_nop 1
        v_cndmask_b32 v5, 0, 1, vcc
        v_add_u32 v4, v4, v5
        s_movk_i32 s3, 640
        v_mul_lo_u32 v6, v4, s3
        v_sub_u32 v3, v3, v6
        v_mul_lo_u32 v6, v3, s7
        v_lshrrev_b32 v6, 16, v6
        v_mul_lo_u32 v7, v6, s48
        v_sub_u32 v7, v3, v7""")
        a(f"""v_lshlrev_b32 v8, 22, v4
        v_lshl_add_u32 v8, v6, 17, v8
        v_lshl_add_u32 v8, v7, 1, v8
        v_lshl_add_u32 v9, v6, 5, v7
        v_lshlrev_b32 v9, 12, v9
        v_cmp_eq_u32 vcc, 0, v4
        v_mov_b32 v10, 1.0
        v_mov_b32 v11, s47
        v_cndmask_b32 v10, v10, v11, vcc
        v_cmp_eq_u32 s[56:57], 0, v5
        s_nop 3""")
        for rt in range(4):
            d = ACC + 4 * (rt * 6 + ct)
            a(f"""v_mul_f32 v12, v10, v{d}
            v_mul_f32 v13, v10, v{d+1}
            v_mul_f32 v14, v10, v{d+2}
            v_mul_f32 v15, v10, v{d+3}
            v_cvt_pk_bf16_f32 v24, v12, v13
            v_cvt_pk_bf16_f32 v25, v14, v15
            v_add_u32 v26, {16*rt}, v2
            v_lshl_add_u32 v27, v26, 6, v8
            s_mov_b64 s[58:59], exec
            s_and_b64 exec, exec, s[56:57]
            buffer_store_dwordx2 v[24:25], v27, s[{SWS}:{SWS+3}], s60 offen
            s_andn2_b64 exec, s[58:59], s[56:57]
            v_and_b32 v27, 0xfffffff3, v26
            v_bfe_u32 v28, v26, 2, 1
            v_lshl_or_b32 v27, v28, 3, v27
            v_bfe_u32 v28, v26, 3, 1
            v_lshl_or_b32 v27, v28, 2, v27
            v_lshl_add_u32 v27, v27, 1, v9
            buffer_store_short v24, v27, s[{SWS}:{SWS+3}], s61 offen
            v_add_u32 v28, 4096, v27
            buffer_store_short_d16_hi v24, v28, s[{SWS}:{SWS+3}], s61 offen
            v_add_u32 v27, 8192, v27
            buffer_store_short v25, v27, s[{SWS}:{SWS+3}], s61 offen
            v_add_u32 v28, 8192, v28
            buffer_store_short_d16_hi v25, v28, s[{SWS}:{SWS+3}], s61 offen
            s_mov_b64 exec, s[58:59]""")
    a("s_branch g1_end2")

    a.label("g1_epi_ffn")
    a(f"""v_and_b32 v2, 15, v{L}
    s_lshl_b32 s6, s{SWM}, 6
    s_add_u32 s6, s6, s{SM0}
    v_add_u32 v2, s6, v2
    s_movk_i32 s7, 3456
    v_mul_lo_u32 v2, v2, s7
    v_lshrrev_b32 v1, 4, v{L}
    v_lshlrev_b32 v1, 3, v1
    v_add_u32 v2, v2, v1
    s_mul_i32 s3, s4, 192
    s_mul_i32 s6, s{SWN}, 96
    s_add_u32 s3, s3, s6
    s_add_u32 s3, s3, {WS_H}
    s_mov_b32 s46, {hex(f2u(0.044715))}
    s_mov_b32 s47, {hex(f2u(-2.0*0.7978845608028654*1.4426950408889634))}""")
    for rt in range(4):
        for ct in range(3):
            for e in range(4):
                gi = ACC + 4 * (rt * 6 + ct) + e
                ui = ACC + 4 * (rt * 6 + ct + 3) + e
                bf16r(a, 3, gi)
                a(f"""v_mul_f32 v4, v3, v3
                v_mul_f32 v4, s46, v4
                v_fma_f32 v4, v4, v3, v3
                v_mul_f32 v4, s47, v4
                v_exp_f32 v4, v4
                s_nop 0
                v_add_f32 v4, 1.0, v4
                v_rcp_f32 v4, v4
                s_nop 0
                v_mul_f32 v4, v4, v3""")
                bf16r(a, 4, 4)
                bf16r(a, 5, ui)
                a(f"v_mul_f32 v{6+e}, v4, v5")
            r = 10 + 2 * (ct & 1)
            a(f"""v_cvt_pk_bf16_f32 v{r}, v6, v7
            v_cvt_pk_bf16_f32 v{r+1}, v8, v9
            buffer_store_dwordx2 v[{r}:{r+1}], v2, s[{SWS}:{SWS+3}], s3 offen offset:{ct*32}""")
        if rt < 3:
            a(f"v_add_u32 v2, {16*3456}, v2")
    a.label("g1_end2")
    a("s_waitcnt vmcnt(0)")
    stamp(a, 3)
    stamp_dump(a, 4, "g1")
    a.label("g1_end")
    a("s_endpgm")


def gen_attn(a):
    kernel_head(a, "attn_kernel")
    Q1, Q2 = 16, 20
    KF = (24, 32)
    VF = (40, 48)
    S = (56, 72)
    O = 88
    VKA, VVA = 104, 106
    VOK, VOV = 114, 115
    VMAX, VT, VM, VTMP, VTM2, VXA, VLT32 = 116, 117, 118, 119, 120, 121, 122
    a("""s_cmp_ge_u32 s2, 256
    s_cbranch_scc1 at_gemm
    s_load_dwordx2 s[6:7], s[0:1], 72
    v_and_b32 v2, 63, v0
    v_lshrrev_b32 v1, 6, v0
    s_nop 0
    v_readfirstlane_b32 s20, v1
    s_and_b32 s21, s2, 7
    s_lshr_b32 s22, s2, 6
    s_lshl_b32 s22, s22, 3
    s_add_u32 s21, s21, s22
    s_lshr_b32 s22, s2, 3
    s_and_b32 s22, s22, 7
    s_lshl_b32 s22, s22, 8
    s_lshl_b32 s3, s20, 5
    s_add_u32 s22, s22, s3
    s_lshl_b32 s38, s20, 10
    s_waitcnt lgkmcnt(0)""")
    srd(a, 8, 6, 7, WS_BYTES)
    stamp(a, 0)
    a(f"""v_and_b32 v1, 31, v2
    v_add_u32 v1, s22, v1
    v_lshlrev_b32 v1, 6, v1
    v_lshrrev_b32 v3, 5, v2
    v_lshl_add_u32 v1, v3, 4, v1
    s_lshl_b32 s3, s21, 17
    s_add_u32 s3, s3, {WS_Q}
    buffer_load_dwordx4 v[{Q1}:{Q1+3}], v1, s[8:11], s3 offen
    buffer_load_dwordx4 v[{Q2}:{Q2+3}], v1, s[8:11], s3 offen offset:32""")
    a(f"""v_lshrrev_b32 v1, 2, v2
    v_lshlrev_b32 v1, 6, v1
    v_and_b32 v3, 3, v2
    v_bfe_u32 v4, v2, 4, 2
    v_xor_b32 v3, v3, v4
    v_lshl_add_u32 v{VOK}, v3, 4, v1
    v_lshrrev_b32 v1, 4, v2
    v_and_b32 v3, 15, v2
    v_xor_b32 v3, v3, v1
    s_lshl_b32 s3, s20, 2
    s_and_b32 s3, s3, 12
    v_xor_b32 v3, s3, v3
    v_lshlrev_b32 v1, 12, v1
    v_lshl_add_u32 v{VOV}, v3, 4, v1""")
    a(f"""s_lshl_b32 s3, s21, 11
    s_lshl_b32 s4, s20, 4
    s_add_u32 s3, s3, s4
    s_lshl_b32 s3, s3, 6
    s_add_u32 s28, s3, {WS_K}
    s_lshl_b32 s3, s21, 5
    s_lshl_b32 s4, s20, 2
    s_add_u32 s3, s3, s4
    s_lshl_b32 s3, s3, 12
    s_add_u32 s30, s3, {WS_VT}""")
    for mf in range(2):
        a(f"""v_and_b32 v1, 31, v2
        v_lshrrev_b32 v3, 5, v2
        v_add_u32 v3, {2*mf}, v3
        v_bfe_u32 v4, v2, 2, 2
        v_xor_b32 v3, v3, v4
        v_lshlrev_b32 v1, 6, v1
        v_lshl_add_u32 v{VKA+mf}, v3, 4, v1""")
    for tt in range(4):
        for mf in range(2):
            a(f"""v_and_b32 v1, 31, v2
            v_lshrrev_b32 v3, 5, v2
            v_add_u32 v3, {tt*4+2*mf}, v3
            v_and_b32 v4, 15, v2
            v_xor_b32 v3, v3, v4
            v_lshlrev_b32 v1, 8, v1
            v_lshl_add_u32 v1, v3, 4, v1
            v_add_u32 v{VVA+tt*2+mf}, 8192, v1""")
    a(f"""v_xor_b32 v{VXA}, 32, v2
    v_lshlrev_b32 v{VXA}, 2, v{VXA}
    v_mov_b32 v{VT}, 0xff800000
    v_mov_b32 v{VM}, 0
    v_cmp_gt_u32 vcc, 32, v2
    s_nop 1
    v_cndmask_b32 v{VLT32}, 0, -1, vcc""")
    for i in range(16):
        a(f"v_mov_b32 v{O+i}, 0")

    def dma(slot):
        a(f"""s_add_u32 m0, s38, {slot*16384}
        s_nop 0
        buffer_load_dwordx4 v{VOK}, s[8:11], s28 offen lds
        s_add_u32 m0, s38, {slot*16384 + 8192}
        s_nop 0
        buffer_load_dwordx4 v{VOV}, s[8:11], s30 offen lds
        s_add_u32 s28, s28, 8192
        s_add_u32 s30, s30, 256""")

    def readK(ti):
        slot, tt = (ti >> 2) & 3, ti & 3
        r = KF[ti & 1]
        for mf in range(2):
            a(f"ds_read_b128 v[{r+4*mf}:{r+4*mf+3}], v{VKA+mf} offset:{slot*16384 + tt*2048}")

    def readV(ti):
        slot, tt = (ti >> 2) & 3, ti & 3
        r = VF[ti & 1]
        for mf in range(2):
            a(f"ds_read_b128 v[{r+4*mf}:{r+4*mf+3}], v{VVA+tt*2+mf} offset:{slot*16384}")

    def qk(ti):
        s_, k_ = S[ti & 1], KF[ti & 1]
        a(f"""v_mfma_f32_32x32x16_bf16 v[{s_}:{s_+15}], v[{k_}:{k_+3}], v[{Q1}:{Q1+3}], 0
        v_mfma_f32_32x32x16_bf16 v[{s_}:{s_+15}], v[{k_+4}:{k_+7}], v[{Q2}:{Q2+3}], v[{s_}:{s_+15}]""")

    for c in range(3):
        dma(c)
    a(f"""s_waitcnt vmcnt(6)
    v_and_b32 v{Q2}, v{Q2}, v{VLT32}
    v_and_b32 v{Q2+1}, v{Q2+1}, v{VLT32}
    v_mov_b32 v{Q2+2}, 0
    v_mov_b32 v{Q2+3}, 0
    s_waitcnt vmcnt(4)
    s_barrier""")
    readK(0)
    readK(1)
    readV(0)
    a("s_waitcnt lgkmcnt(4)")
    qk(0)
    a("s_mov_b32 s37, 3")
    stamp(a, 1)
    resc = []

    def body(tagp, last):
        for ti in range(16):
            tag = f"{tagp}_{ti}"
            c_local = ti >> 2
            if (ti & 3) == 2:
                if last:
                    if c_local < 3:
                        a(f"s_waitcnt vmcnt({(2, 2, 0)[c_local]})")
                        a("s_barrier")
                        if c_local == 0:
                            dma(3)
                else:
                    a("""s_waitcnt vmcnt(2)
                    s_barrier""")
                    dma((c_local + 3) & 3)
            fin = last and ti == 15
            s_ = S[ti & 1]
            if not fin:
                a("s_waitcnt lgkmcnt(2)")
                qk(ti + 1)
                readK(ti + 2)
                readV(ti + 1)
            a(f"""v_max3_f32 v{VMAX}, v{s_}, v{s_+1}, v{s_+2}
            v_max3_f32 v{VTMP}, v{s_+3}, v{s_+4}, v{s_+5}
            v_max3_f32 v{VMAX}, v{VMAX}, v{s_+6}, v{s_+7}
            v_max3_f32 v{VTMP}, v{VTMP}, v{s_+8}, v{s_+9}
            v_max3_f32 v{VMAX}, v{VMAX}, v{s_+10}, v{s_+11}
            v_max3_f32 v{VTMP}, v{VTMP}, v{s_+12}, v{s_+13}
            v_max3_f32 v{VMAX}, v{VMAX}, v{s_+14}, v{s_+15}
            v_max_f32 v{VMAX}, v{VMAX}, v{VTMP}
            v_cmp_gt_f32 vcc, v{VMAX}, v{VT}
            s_cbranch_vccnz at_resc{tag}""")
            a.label(f"at_back{tag}")
            for i in range(16):
                a(f"v_exp_f32 v{s_+i}, v{s_+i}")
            a("s_nop 0")
            P = s_
            for i in range(8):
                a(f"v_cvt_pk_bf16_f32 v{P+i}, v{s_+2*i}, v{s_+2*i+1}")
            v_ = VF[ti & 1]
            a(f"""s_waitcnt lgkmcnt({0 if fin else 4})
            s_nop 0
            v_mfma_f32_32x32x16_bf16 v[{O}:{O+15}], v[{v_}:{v_+3}], v[{P}:{P+3}], v[{O}:{O+15}]
            v_mfma_f32_32x32x16_bf16 v[{O}:{O+15}], v[{v_+4}:{v_+7}], v[{P+4}:{P+7}], v[{O}:{O+15}]""")
            resc.append((tag, ti, fin))

    a.label("at_loop")
    body("l", False)
    a("""s_sub_u32 s37, s37, 1
    s_cmp_lg_u32 s37, 0
    s_cbranch_scc1 at_loop""")
    body("f", True)
    stamp(a, 2)
    a(f"""s_nop 15
    s_nop 3
    v_or_b32 v1, 32, v2
    v_lshlrev_b32 v1, 2, v1
    ds_bpermute_b32 v{VTMP}, v1, v{O+8}
    s_waitcnt lgkmcnt(0)
    v_rcp_f32 v{VTM2}, v{VTMP}
    s_nop 0
    v_fma_f32 v3, -v{VTMP}, v{VTM2}, 1.0
    v_fma_f32 v{VTM2}, v3, v{VTM2}, v{VTM2}
    v_and_b32 v1, 31, v2
    v_add_u32 v1, s22, v1
    s_movk_i32 s3, 1280
    v_mul_lo_u32 v1, v1, s3
    v_lshrrev_b32 v3, 5, v2
    v_lshl_add_u32 v1, v3, 3, v1
    s_mul_i32 s3, s21, 40
    s_add_u32 s3, s3, {WS_O}""")
    for g in range(3):
        for e in range(4):
            a(f"v_mul_f32 v{4+e}, v{O+4*g+e}, v{VTM2}")
        a("""v_cvt_pk_bf16_f32 v8, v4, v5
        v_cvt_pk_bf16_f32 v9, v6, v7""")
        if g == 2:
            a("""v_cmp_gt_u32 vcc, 32, v2
            s_and_saveexec_b64 s[24:25], vcc""")
        a(f"buffer_store_dwordx2 v[8:9], v1, s[8:11], s3 offen offset:{16*g}")
        if g == 2:
            a("s_mov_b64 exec, s[24:25]")
        a("s_nop 1")
    stamp(a, 3)
    stamp_dump(a, 4, "at")
    a("s_branch at_end")
    for tag, ti, fin in resc:
        s_ = S[ti & 1]
        s2 = S[(ti + 1) & 1]
        a.label(f"at_resc{tag}")
        a(f"""ds_bpermute_b32 v{VTMP}, v{VXA}, v{VMAX}
        s_waitcnt lgkmcnt(0)
        v_max_f32 v{VMAX}, v{VMAX}, v{VTMP}
        v_cmp_gt_f32 vcc, v{VMAX}, v{VT}
        s_nop 1
        v_cndmask_b32 v{VMAX}, 0, v{VMAX}, vcc
        v_add_f32 v{VTMP}, v{VM}, v{VMAX}""")
        bf16r(a, VTMP, VTMP)
        a(f"""v_sub_f32 v{VMAX}, v{VTMP}, v{VM}
        v_mov_b32 v{VM}, v{VTMP}
        v_max_f32 v{VTM2}, 0, v{VMAX}
        v_sub_f32 v{VTM2}, 0, v{VTM2}
        v_exp_f32 v{VTM2}, v{VTM2}
        v_lshrrev_b32 v{VTMP}, 16, v{VTMP}
        v_xor_b32 v{VTMP}, 0x8000, v{VTMP}
        s_nop 15
        s_nop 15
        v_and_b32 v{Q2+2}, v{VTMP}, v{VLT32}
        v_mov_b32 v{VT}, 0x41000000""")
        for i in range(16):
            a(f"v_mul_f32 v{O+i}, v{O+i}, v{VTM2}")
        for i in range(16):
            a(f"v_sub_f32 v{s_+i}, v{s_+i}, v{VMAX}")
        if not fin:
            for i in range(16):
                a(f"v_sub_f32 v{s2+i}, v{s2+i}, v{VMAX}")
        a(f"s_branch at_back{tag}")
    a.label("at_end")
    a("s_endpgm")
    a.label("at_gemm")
    a("""s_sub_u32 s2, s2, 256
    v_cmp_le_u32 vcc, 256, v0
    s_cbranch_vccnz at_end""")
    gemm_small(a, "dp", "down")


def gemm_small(a, tag, kind):
    nsub = 1
    down = kind == "down"
    a(f"""s_cmp_ge_u32 s2, 160
    s_cbranch_scc1 {tag}_end
    s_load_dwordx2 s[4:5], s[0:1], {48 if down else 16}
    s_load_dwordx2 s[6:7], s[0:1], 72
    s_load_dwordx2 s[26:27], s[0:1], 0
    s_load_dwordx2 s[50:51], s[0:1], 56""")
    gemm_setup(a, nsub)
    a("s_waitcnt lgkmcnt(0)")
    srd(a, S_WS, 6, 7, WS_BYTES)
    srd(a, S_ASRD, 6, 7, WS_BYTES)
    srd(a, S_B0, 4, 5, (1728 if down else 640) * 640 * 2)
    srd(a, 52, 26, 27, 2621440)
    srd(a, 56, 50, 51, 2621440)
    a(f"""s_lshr_b32 s3, s2, 3
    s_and_b32 s5, s2, 7
    s_lshl_b32 s5, s5, 1
    s_cmp_ge_u32 s3, 10
    s_cselect_b32 s4, 1, 0
    s_add_u32 s5, s5, s4
    s_mul_i32 s4, s4, 10
    s_sub_u32 s4, s3, s4
    s_lshl_b32 s{S_M0}, s5, 7
    s_movk_i32 s44, 1280""")
    lda = 3456 if down else 1280
    gemm_voffA(a, V_OA, lda)
    gemm_voffB(a, V_OB, 44)
    L = V_LANE
    a(f"""v_and_b32 v2, 31, v{L}
    s_lshl_b32 s6, s{S_WM}, 6
    s_add_u32 s6, s6, s{S_M0}
    v_add_u32 v2, s6, v2
    s_movk_i32 s7, 1280
    v_mul_lo_u32 v2, v2, s7
    v_lshrrev_b32 v1, 5, v{L}
    v_lshlrev_b32 v1, 3, v1
    v_add_u32 v25, v2, v1
    v_add_u32 v26, {32*1280}, v25
    s_lshl_b32 s3, s4, 7
    s_lshl_b32 s6, s{S_WN}, 6
    s_add_u32 s49, s3, s6
    s_add_u32 s48, s49, {WS_BR}
    s_lshl_b32 s6, s4, 7""")
    gemm_offsets(a, nsub, lda, WS_H if down else WS_O, 44, (6,))
    zero_acc(a, 32)
    gemm_loop(a, tag, nsub, True, 27 if down else 10, S_ASRD, V_OA)
    if down:
        for t in range(2):
            for g in range(4):
                acc = V_ACC + 16 * t + 4 * g
                r = 12 + 2 * (g & 1)
                a(f"""v_cvt_pk_bf16_f32 v{r}, v{acc}, v{acc+1}
                v_cvt_pk_bf16_f32 v{r+1}, v{acc+2}, v{acc+3}
                buffer_store_dwordx2 v[{r}:{r+1}], v{25+t}, s[{S_WS}:{S_WS+3}], s48 offen offset:{g*16}""")
    else:
        for t in range(2):
            for g in range(4):
                a(f"""buffer_load_dwordx2 v[{32+2*g}:{33+2*g}], v{25+t}, s[52:55], s49 offen offset:{g*16}
                buffer_load_dwordx2 v[{40+2*g}:{41+2*g}], v{25+t}, s[{S_WS}:{S_WS+3}], s48 offen offset:{g*16}""")
            a("s_waitcnt vmcnt(0)")
            for g in range(4):
                for e in range(4):
                    acc = V_ACC + 16 * t + 4 * g + e
                    xr = 32 + 2 * g + (e >> 1)
                    br = 40 + 2 * g + (e >> 1)
                    bf16r(a, 10, acc)
                    if e & 1:
                        a(f"""v_and_b32 v11, 0xffff0000, v{xr}
                        v_and_b32 v3, 0xffff0000, v{br}""")
                    else:
                        a(f"""v_lshlrev_b32 v11, 16, v{xr}
                        v_lshlrev_b32 v3, 16, v{br}""")
                    a("v_add_f32 v10, v10, v11")
                    bf16r(a, 10, 10)
                    a(f"v_add_f32 v{4+e}, v10, v3")
                r = 12 + 2 * (g & 1)
                a(f"""v_cvt_pk_bf16_f32 v{r}, v4, v5
                v_cvt_pk_bf16_f32 v{r+1}, v6, v7
                buffer_store_dwordx2 v[{r}:{r+1}], v{25+t}, s[56:59], s49 offen offset:{g*16}""")
    a.label(f"{tag}_end")
    a("s_endpgm")


def gen_gemm2(a):
    kernel_head(a, "gemm2_kernel")
    gemm_small(a, "g2", "final")


def kd(name, vgpr, sgpr=102):
    acc = (vgpr + 3) // 4 * 4
    return f""".amdhsa_kernel {name}
  .amdhsa_next_free_vgpr {vgpr}
  .amdhsa_next_free_sgpr {sgpr}
  .amdhsa_accum_offset {acc}
  .amdhsa_group_segment_fixed_size 0
  .amdhsa_kernarg_size 80
  .amdhsa_user_sgpr_count 2
  .amdhsa_user_sgpr_kernarg_segment_ptr 1
  .amdhsa_system_sgpr_workgroup_id_x 1
.end_amdhsa_kernel"""


def main():
    hdr = open(f"cdna_kernels/{NAME}.s.ref").read().split("\n")
    head = [l for l in hdr if l.startswith(";") and "@launch" not in l]
    a = Asm()
    for l in head:
        a.raw(l)
    a.raw("; @launch kernel=ln_kernel grid=(512,1,1) block=(256,1,1) lds=0")
    a.raw(f"; @launch kernel=gemm1_kernel grid=(256,1,1) block=(512,1,1) lds={G1_NST*G1_STG}")
    a.raw("; @launch kernel=attn_kernel grid=(416,1,1) block=(512,1,1) lds=65536")
    a.raw(f"; @launch kernel=gemm2_kernel grid=(160,1,1) block=(256,1,1) lds={NST*STG}")
    a.raw('.amdgcn_target "amdgcn-amd-amdhsa--gfx950"')
    a.raw(".text")
    gen_ln(a)
    gen_gemm1(a)
    gen_attn(a)
    gen_gemm2(a)
    a.raw('.section .rodata,"a"')
    for name, v in (("ln_kernel", 48), ("gemm1_kernel", 240), ("attn_kernel", 128), ("gemm2_kernel", 128)):
        a.raw(".p2align 6")
        a.raw(kd(name, v))
    open(f"cdna_kernels/{NAME}.s", "w").write("\n".join(a.L) + "\n")


if __name__ == "__main__":
    main()
```
